```python
import torch

def _softmax(x, axis=-1):
    return torch.softmax(x, dim=axis)
def _gelu(x):
    return torch.nn.functional.gelu(x, approximate="tanh")
def _silu(x):
    return torch.nn.functional.silu(x)
def _sigmoid(x):
    return torch.sigmoid(x)
def _layernorm(x, axis=-1, eps=1e-5):
    m = x.mean(dim=axis, keepdim=True)
    v = x.var(dim=axis, keepdim=True, unbiased=False)
    return (x - m) / torch.sqrt(v + eps)
def _scatter_add(tgt, idx, src, axis=0):
    return tgt.clone().index_add_(axis, idx, src)
def _segment_sum(src, seg, n):
    out = torch.zeros((n,) + src.shape[1:], dtype=src.dtype)
    return out.index_add_(0, seg, src)
def _pad(x, pw):
    flat = tuple(v for pair in reversed(pw) for v in pair)
    return torch.nn.functional.pad(x, flat)

kernel_name = 'standalone__graph_attention_gat__graph'

def setup_inputs():

    _w = (lambda a: (lambda t: t.to(torch.bfloat16) if t.is_floating_point() else t)(torch.as_tensor(a)))
    N, deg, D = 10000, 16, 256
    H = 4
    E = N * deg
    return {
        "x": _w((lambda *s: torch.randn(*s, dtype=torch.bfloat16) * 0.4)(N, D) * 0.1),
        "src": _w((lambda lo, hi, *s: torch.randint(lo, hi, s))(0, N, E).to(torch.int64)),
        "dst": _w((lambda lo, hi, *s: torch.randint(lo, hi, s))(0, N, E).to(torch.int64)),
        "w": _w((lambda *s: torch.randn(*s, dtype=torch.bfloat16) * 1.6)(H, D, D) * (1.0 / D ** 0.5)),
        "a_src": _w((lambda *s: torch.randn(*s, dtype=torch.bfloat16) * 1.6)(H, D) * 0.1),
        "a_dst": _w((lambda *s: torch.randn(*s, dtype=torch.bfloat16) * 1.6)(H, D) * 0.1),
    }

def reference(x, src, dst, w, a_src, a_dst):
    N, D = x.shape
    H = w.shape[0]
    h = torch.einsum('nd,hdf->nhf', x, w)
    hs = h[src]
    hd = h[dst]
    e = torch.einsum('ehf,hf->eh', hs, a_src) + torch.einsum('ehf,hf->eh', hd, a_dst)
    e = torch.where(e > 0, e, 0.2 * e)
    exp_e = torch.exp(e)
    denom = _segment_sum(exp_e, dst, N) + 1e-9
    alpha = exp_e / denom[dst]
    out = _segment_sum(alpha[:, :, None] * hs, dst, N)
    return out.mean(1)
```

```python
import sys

N = 10000
E = 160000
NBIN = 250
NPB = 40
CELL_BYTES = 16000
STAB_OFF = 4194304
WF_OFF = 5242880
XBYTES = N * 512

out = []
def A(s=""):
    out.append(s)

def vr(b, n):
    return f"v[{b}:{b+n-1}]"

HEADER = """; GAT: out[n] = mean_h sum_e alpha[e,h] * (x[src e] @ W_h)  computed as  (sum_e alpha x[src e]) @ W
; @launch kernel=gat_prep_kernel grid=(256,1,1) block=(640,1,1) lds={lds_a}
; @launch kernel=gat_main_kernel grid=(250,1,1) block=(512,1,1) lds={lds_b}
.amdgcn_target "amdgcn-amd-amdhsa--gfx950"
.text
"""

KA_CELLS = 0
KA_CNT = 16000
KA_BT = 17024
KA_BTS = 528
KA_LDS = KA_BT + 16 * KA_BTS

def gen_prep():
    A(".globl gat_prep_kernel")
    A(".p2align 8")
    A(".type gat_prep_kernel,@function")
    A("gat_prep_kernel:")
    A("  s_cmp_ge_u32 s2, 256")
    A("  s_cbranch_scc1 KA_END")
    A("  s_load_dwordx8 s[4:11], s[0:1], 0")
    A("  s_load_dwordx4 s[12:15], s[0:1], 32")
    A("  s_load_dwordx2 s[16:17], s[0:1], 64")
    A("  v_lshrrev_b32 v6, 6, v0")
    A("  v_and_b32 v1, 63, v0")
    A("  v_and_b32 v2, 15, v1")
    A("  v_lshrrev_b32 v3, 4, v1")
    A("  v_readfirstlane_b32 s24, v6")
    A("  s_lshr_b32 s25, s2, 6")
    A("  s_and_b32 s26, s2, 63")
    A("  s_waitcnt lgkmcnt(0)")
    A("  s_mov_b32 s20, s4")
    A("  s_and_b32 s21, s5, 0xffff")
    A(f"  s_mov_b32 s22, {XBYTES}")
    A("  s_mov_b32 s23, 0x20000")
    A(f"  s_add_u32 s28, s16, {STAB_OFF}")
    A("  s_addc_u32 s29, s17, 0")
    A("  s_and_b32 s29, s29, 0xffff")
    A(f"  s_mov_b32 s30, {N*32}")
    A("  s_mov_b32 s31, 0x20000")
    A("  v_mov_b32 v4, 0")
    A("  v_mov_b32 v5, 0")
    A("  s_cmp_ge_u32 s2, 250")
    A("  s_cbranch_scc1 KA_NOEDGE")
    A("  s_mul_i32 s27, s2, 2560")
    A("  v_lshl_add_u32 v6, v0, 2, s27")
    A("  global_load_dword v4, v6, s[8:9]")
    A("  global_load_dword v5, v6, s[6:7]")
    A("KA_NOEDGE:")
    A("  s_cmp_ge_u32 s24, 8")
    A("  s_cbranch_scc1 KA_SHUF_LOAD")
    A("  v_mov_b32 v152, s12")
    A("  v_mov_b32 v153, s13")
    A("  v_mov_b32 v154, s14")
    A("  v_mov_b32 v155, s15")
    A("  v_cmp_eq_u32 vcc, 1, v2")
    A("  s_lshl_b32 s27, s25, 9")
    A("  v_lshlrev_b32 v156, 4, v3")
    A("  v_add_u32 v156, s27, v156")
    A("  v_cndmask_b32 v152, v152, v154, vcc")
    A("  v_cndmask_b32 v153, v153, v155, vcc")
    A("  v_add_co_u32 v152, vcc, v152, v156")
    A("  s_nop 1")
    A("  v_addc_co_u32 v153, vcc, 0, v153, vcc")
    for i in range(32):
        A(f"  v_mov_b32 v{104+i}, 0")
    A("  v_cmp_gt_u32 vcc, 2, v2")
    A("  s_and_saveexec_b64 s[32:33], vcc")
    for kk in range(8):
        A(f"  global_load_dwordx4 {vr(104+4*kk,4)}, v[152:153], off offset:{kk*64}")
    A("  s_mov_b64 exec, s[32:33]")
    A("  s_lshl_b32 s27, s25, 17")
    A("  s_lshl_b32 s34, s24, 14")
    A("  s_add_u32 s27, s27, s34")
    A("  v_lshlrev_b32 v156, 9, v2")
    A("  v_lshl_add_u32 v156, v3, 4, v156")
    A("  v_add_u32 v156, s27, v156")
    A("  v_add_u32 v157, 0x2000, v156")
    for mt in range(2):
        for kk in range(8):
            A(f"  global_load_dwordx4 {vr(40+32*mt+4*kk,4)}, v{156+mt}, s[10:11] offset:{kk*64}")
    A("  s_branch KA_XLOAD")
    A("KA_SHUF_LOAD:")
    A("  s_lshr_b32 s27, s2, 5")
    A("  s_lshl_b32 s27, s27, 6")
    A("  s_and_b32 s34, s2, 31")
    A("  s_lshl_b32 s34, s34, 14")
    A("  s_add_u32 s27, s27, s34")
    A("  s_sub_u32 s34, s24, 8")
    A("  s_lshl_b32 s34, s34, 3")
    A("  s_add_u32 s27, s27, s34")
    A("  v_lshrrev_b32 v156, 2, v2")
    A("  v_lshlrev_b32 v156, 4, v156")
    A("  v_and_b32 v157, 3, v2")
    A("  v_lshl_add_u32 v156, v157, 1, v156")
    A("  v_lshl_add_u32 v156, v3, 12, v156")
    A("  v_add_u32 v156, s27, v156")
    for j in range(8):
        A(f"  global_load_ushort v{44+j}, v156, s[10:11] offset:{j*512}")
    A("KA_XLOAD:")
    A("  s_mul_i32 s27, s26, 160")
    A("  s_lshl_b32 s34, s24, 4")
    A("  s_add_u32 s27, s27, s34")
    A("  v_add_u32 v158, s27, v2")
    A("  v_lshlrev_b32 v158, 9, v158")
    A("  v_lshl_add_u32 v158, v3, 4, v158")
    for kk in range(8):
        A(f"  buffer_load_dwordx4 {vr(8+4*kk,4)}, v158, s[20:23], 0 offen offset:{kk*64}")
    A("  v_mov_b32 v160, -1")
    A("  v_mov_b32 v161, -1")
    A("  v_mov_b32 v162, -1")
    A("  v_mov_b32 v163, -1")
    A("  v_mov_b32 v164, 0")
    A("  v_mov_b32 v165, 0")
    A("  v_mov_b32 v166, 0")
    A("  v_mov_b32 v167, 0")
    A("  v_lshlrev_b32 v159, 4, v0")
    A(f"  ds_write_b128 v159, v[160:163] offset:{KA_CELLS}")
    A("  v_cmp_gt_u32 vcc, 360, v0")
    A("  s_and_saveexec_b64 s[32:33], vcc")
    A(f"  ds_write_b128 v159, v[160:163] offset:{KA_CELLS+10240}")
    A("  s_mov_b64 exec, s[32:33]")
    A("  v_cmp_gt_u32 vcc, 592, v0")
    A("  s_and_saveexec_b64 s[32:33], vcc")
    A(f"  ds_write_b128 v159, v[164:167] offset:{KA_CNT}")
    A("  s_mov_b64 exec, s[32:33]")
    A("  s_waitcnt lgkmcnt(0)")
    A("  s_barrier")
    A("  s_cmp_ge_u32 s2, 250")
    A("  s_cbranch_scc1 KA_NOPART")
    A("  s_cmp_ge_u32 s24, 8")
    A("  s_cbranch_scc1 KA_PW2")
    A("  s_waitcnt vmcnt(32)")
    A("  s_branch KA_PW3")
    A("KA_PW2:")
    A("  s_waitcnt vmcnt(16)")
    A("KA_PW3:")
    A("  v_mul_u32_u24 v6, 52429, v4")
    A("  v_lshrrev_b32 v6, 21, v6")
    A("  v_mul_u32_u24 v7, 40, v6")
    A("  v_sub_u32 v7, v4, v7")
    A("  v_lshl_or_b32 v7, v7, 16, v5")
    A("  v_lshlrev_b32 v148, 2, v6")
    A("  v_mov_b32 v149, 1")
    A(f"  ds_add_rtn_u32 v150, v148, v149 offset:{KA_CNT}")
    A("  v_mov_b32 v151, 0xfffffffe")
    A("  v_lshlrev_b32 v148, 6, v6")
    A("  s_waitcnt lgkmcnt(0)")
    A("  v_cmp_gt_u32 vcc, 15, v150")
    A("  v_min_u32 v150, 15, v150")
    A("  v_lshl_add_u32 v148, v150, 2, v148")
    A("  v_cndmask_b32 v7, v151, v7, vcc")
    A(f"  ds_write_b32 v148, v7 offset:{KA_CELLS}")
    A("KA_NOPART:")
    A("  s_cmp_ge_u32 s24, 8")
    A("  s_cbranch_scc1 KA_SHUF_ST")
    A("  s_waitcnt vmcnt(8)")
    for mt in range(2):
        for kk in range(8):
            c = "0" if kk == 0 else vr(136+4*mt, 4)
            A(f"  v_mfma_f32_16x16x32_bf16 {vr(136+4*mt,4)}, {vr(40+32*mt+4*kk,4)}, {vr(104+4*kk,4)}, {c}")
    A(f"  v_mul_u32_u24 v148, {2*KA_BTS}, v2")
    A("  s_lshl_b32 s27, s24, 6")
    A("  v_lshl_add_u32 v148, v3, 3, v148")
    A("  v_add_u32 v148, s27, v148")
    A("  s_mov_b32 s34, 0x3fb8aa3b")
    A("  s_mov_b32 s35, 0xffff0000")
    A("  v_cmp_gt_u32 vcc, 2, v2")
    A("  s_nop 4")
    for mt in range(2):
        b = 136 + 4 * mt
        for r in range(4):
            A(f"  v_mul_f32 v{b+r}, s34, v{b+r}")
        A(f"  v_cvt_pk_bf16_f32 v150, v{b}, v{b+1}")
        A(f"  v_cvt_pk_bf16_f32 v151, v{b+2}, v{b+3}")
        A("  v_lshlrev_b32 v152, 16, v150")
        A("  v_and_b32 v153, s35, v150")
        A("  v_lshlrev_b32 v154, 16, v151")
        A("  v_and_b32 v155, s35, v151")
        for r in range(4):
            A(f"  v_sub_f32 v{152+r}, v{b+r}, v{152+r}")
        A("  v_cvt_pk_bf16_f32 v152, v152, v153")
        A("  v_cvt_pk_bf16_f32 v153, v154, v155")
        A("  s_and_saveexec_b64 s[32:33], vcc")
        A(f"  ds_write_b64 v148, v[150:151] offset:{KA_BT+32*mt}")
        A(f"  ds_write_b64 v148, v[152:153] offset:{KA_BT+KA_BTS+32*mt}")
        A("  s_mov_b64 exec, s[32:33]")
    A("  s_branch KA_B1")
    A("KA_SHUF_ST:")
    A("  s_waitcnt vmcnt(8)")
    for t in range(4):
        A(f"  v_lshl_or_b32 v{40+t}, v{45+2*t}, 16, v{44+2*t}")
    A("  s_lshl_b32 s27, s2, 11")
    A(f"  s_add_u32 s27, s27, {WF_OFF - 512*16}")
    A("  v_lshl_add_u32 v148, v0, 4, s27")
    A("  global_store_dwordx4 v148, v[40:43], s[16:17]")
    A("KA_B1:")
    A("  s_waitcnt vmcnt(0) lgkmcnt(0)")
    A("  s_barrier")
    A("  s_cmp_ge_u32 s2, 250")
    A("  s_cbranch_scc1 KA_NOCOPY")
    A(f"  ds_read_b128 v[160:163], v159 offset:{KA_CELLS}")
    A(f"  ds_read_b128 v[164:167], v159 offset:{KA_CELLS+10240}")
    A("  v_lshrrev_b32 v148, 2, v0")
    A(f"  v_mul_u32_u24 v148, {CELL_BYTES}, v148")
    A("  v_and_b32 v149, 3, v0")
    A("  v_lshl_add_u32 v148, v149, 4, v148")
    A("  s_lshl_b32 s27, s2, 6")
    A("  v_add_u32 v148, s27, v148")
    A(f"  v_add_u32 v149, {160*CELL_BYTES}, v148")
    A("  s_waitcnt lgkmcnt(1)")
    A("  global_store_dwordx4 v148, v[160:163], s[16:17]")
    A("  v_cmp_gt_u32 vcc, 360, v0")
    A("  s_and_saveexec_b64 s[32:33], vcc")
    A("  s_cbranch_execz KA_CP2")
    A("  s_waitcnt lgkmcnt(0)")
    A("  global_store_dwordx4 v149, v[164:167], s[16:17]")
    A("KA_CP2:")
    A("  s_mov_b64 exec, s[32:33]")
    A("KA_NOCOPY:")
    A(f"  v_mul_u32_u24 v148, {KA_BTS}, v2")
    A("  v_lshl_add_u32 v148, v3, 4, v148")
    for kk in range(8):
        A(f"  ds_read_b128 {vr(40+4*kk,4)}, v148 offset:{KA_BT+kk*64}")
    for kk in range(8):
        A(f"  s_waitcnt lgkmcnt({7-kk})")
        c = "0" if kk == 0 else "v[144:147]"
        A(f"  v_mfma_f32_16x16x32_bf16 v[144:147], {vr(8+4*kk,4)}, {vr(40+4*kk,4)}, {c}")
    A("  s_mul_i32 s27, s26, 160")
    A("  s_lshl_b32 s34, s24, 4")
    A("  s_add_u32 s27, s27, s34")
    A("  s_lshl_b32 s27, s27, 5")
    A("  s_lshl_b32 s34, s25, 2")
    A("  s_add_u32 s27, s27, s34")
    A("  v_lshlrev_b32 v149, 7, v3")
    A("  v_lshl_add_u32 v149, v2, 3, v149")
    A("  v_add_u32 v149, s27, v149")
    A("  v_and_b32 v150, 13, v2")
    A("  v_cmp_eq_u32 vcc, 0, v150")
    A("  s_nop 4")
    for r in range(4):
        A(f"  v_add_f32_dpp v{152+r}, v{144+r}, v{144+r} quad_perm:[1,0,3,2] row_mask:0xf bank_mask:0xf")
    A("  s_and_saveexec_b64 s[32:33], vcc")
    for r in range(4):
        A(f"  buffer_store_dword v{152+r}, v149, s[28:31], 0 offen offset:{r*32}")
    A("KA_END:")
    A("  s_endpgm")

A2S = 2064
KB_A2 = 0
KB_P = 40 * A2S
PS = 272
PG = 16 * PS
KB_EL = KB_P + 10 * PG
KB_DUMMY = KB_EL + 5120
KB_SD = KB_DUMMY + 128
KB_CNT = KB_SD + 640
KB_FLAG = KB_CNT + 48
KB_LDS = KB_CNT + 64

D = 3
RB = 64
ACC = 160
DEN = 192
T0 = 196
PF = 212
ENT = 216
AD = 224
ONES = 232
V_RC = 236
V_G32 = 237
V_PL = 238
V_A2L = 239
V_TMP = 240
V_TMP2 = 241

def issue_a():
    A("  s_lshl_b32 s60, s52, 2")
    A("  s_add_u32 s60, s60, s59")
    A("  s_lshl_b32 s60, s60, 9")
    A("  s_lshl_b32 s61, s53, 7")
    A("  s_add_u32 s60, s60, s61")
    A(f"  s_add_u32 s60, s60, {KB_EL}")
    A("  s_cmp_ge_u32 s52, s58")
    A(f"  s_cselect_b32 s60, {KB_DUMMY}, s60")
    A(f"  v_add_u32 v{V_TMP}, s60, v{V_G32}")
    A(f"  ds_read_b128 {vr(ENT,4)}, v{V_TMP}")
    A(f"  ds_read_b128 {vr(ENT+4,4)}, v{V_TMP} offset:16")
    A("  s_cmp_eq_u32 s52, 0")
    A("  s_cselect_b32 s61, s62, s63")
    A("  s_cmp_eq_u32 s52, 2")
    A("  s_cselect_b32 s61, s64, s61")
    A("  s_add_u32 s53, s53, 1")
    A("  s_cmp_ge_u32 s53, s61")
    A("  s_cselect_b32 s53, 0, s53")
    A("  s_addc_u32 s52, s52, 0")

def issue_b(st):
    for i in range(8):
        A(f"  v_mad_u32_u16 v{AD+i}, v{ENT+i}, s32, v{V_RC}")
    for i in range(8):
        A(f"  buffer_load_dwordx4 {vr(RB+32*st+4*i,4)}, v{AD+i}, s[16:19], 0 offen")

def perms(st, q, tb):
    R = lambda i: RB + 32 * st + 4 * i + q
    for t in range(4):
        A(f"  v_perm_b32 v{tb+t}, v{R(2*t+1)}, v{R(2*t)}, s30")
    for t in range(4):
        A(f"  v_perm_b32 v{tb+4+t}, v{R(2*t+1)}, v{R(2*t)}, s31")

def mf(q, tb):
    for u in range(2):
        a = ACC + 4 * (2 * q + u)
        A(f"  v_mfma_f32_16x16x32_bf16 {vr(a,4)}, {vr(PF,4)}, {vr(tb+4*u,4)}, {vr(a,4)}")

def consume(st):
    TA, TB = T0, T0 + 8
    perms(st, 0, TA)
    perms(st, 1, TB)
    mf(0, TA)
    perms(st, 2, TA)
    mf(1, TB)
    perms(st, 3, TB)
    mf(2, TA)
    A(f"  v_mfma_f32_16x16x32_bf16 {vr(DEN,4)}, {vr(PF,4)}, {vr(ONES,4)}, {vr(DEN,4)}")
    mf(3, TB)

def finalize():
    A("  s_nop 7")
    A("  s_lshl_b32 s60, s54, 2")
    A("  s_add_u32 s60, s60, s59")
    A(f"  s_mul_i32 s60, s60, {4*A2S}")
    A(f"  v_add_u32 v{V_TMP2}, s60, v{V_A2L}")
    A("  s_mov_b32 s61, 0x3089705f")
    for r in range(4):
        A(f"  v_add_f32 v{DEN+r}, s61, v{DEN+r}")
    for r in range(4):
        A(f"  v_rcp_f32 v{DEN+r}, v{DEN+r}")
    A("  s_nop 0")
    for r in range(4):
        A(f"  v_mul_f32 v{DEN+r}, 0.25, v{DEN+r}")
    for r in range(4):
        for j in range(8):
            A(f"  v_mul_f32 v{ACC+4*j+r}, v{ACC+4*j+r}, v{DEN+r}")
        tb = T0 + 4 * (r & 3)
        for t in range(4):
            A(f"  v_cvt_pk_bf16_f32 v{tb+t}, v{ACC+4*(2*t)+r}, v{ACC+4*(2*t+1)+r}")
        A(f"  ds_write_b128 v{V_TMP2}, {vr(tb,4)} offset:{r*512}")
    for i in range(36):
        A(f"  v_mov_b32 v{ACC+i}, 0")

def gen_main():
    A(".globl gat_main_kernel")
    A(".p2align 8")
    A(".type gat_main_kernel,@function")
    A("gat_main_kernel:")
    A("  s_cmp_ge_u32 s2, 250")
    A("  s_cbranch_scc1 KB_END")
    A("  s_load_dwordx4 s[4:7], s[0:1], 0")
    A("  s_load_dwordx2 s[8:9], s[0:1], 16")
    A("  s_load_dwordx2 s[12:13], s[0:1], 48")
    A("  s_load_dwordx2 s[14:15], s[0:1], 64")
    A("  v_lshrrev_b32 v6, 6, v0")
    A("  v_and_b32 v1, 63, v0")
    A("  v_and_b32 v2, 15, v1")
    A("  v_lshrrev_b32 v3, 4, v1")
    A("  v_readfirstlane_b32 s28, v6")
    A("  s_mul_i32 s29, s2, 40")
    A("  s_mov_b32 s30, 0x05040100")
    A("  s_mov_b32 s31, 0x07060302")
    A("  s_movk_i32 s32, 0x200")
    A("  s_mov_b32 s33, 0xfffffffe")
    A("  s_waitcnt lgkmcnt(0)")
    A("  s_mov_b32 s16, s4")
    A("  s_and_b32 s17, s5, 0xffff")
    A(f"  s_mov_b32 s18, {XBYTES}")
    A("  s_mov_b32 s19, 0x20000")
    A(f"  s_mul_i32 s60, s2, {CELL_BYTES}")
    A("  s_add_u32 s24, s14, s60")
    A("  s_addc_u32 s25, s15, 0")
    A(f"  s_add_u32 s26, s14, {STAB_OFF}")
    A("  s_addc_u32 s27, s15, 0")
    A("  s_lshl_b32 s60, s28, 16")
    A(f"  s_add_u32 s60, s60, {WF_OFF}")
    A("  s_add_u32 s20, s14, s60")
    A("  s_addc_u32 s21, s15, 0")
    A("  s_and_b32 s21, s21, 0xffff")
    A("  s_mov_b32 s22, 65536")
    A("  s_mov_b32 s23, 0x20000")
    A("  v_lshlrev_b32 v4, 4, v0")
    A("  global_load_dwordx4 v[8:11], v4, s[24:25]")
    for i in range(4):
        A(f"  v_mov_b32 v{12+i}, -1")
    A("  v_add_u32 v5, 0x2000, v4")
    A("  v_cmp_gt_u32 vcc, 488, v0")
    A("  s_and_saveexec_b64 s[34:35], vcc")
    A("  global_load_dwordx4 v[12:15], v5, s[24:25]")
    A("  s_mov_b64 exec, s[34:35]")
    A("  v_add_u32 v5, s29, v0")
    A("  v_lshlrev_b32 v5, 5, v5")
    A("  v_cmp_gt_u32 vcc, 40, v0")
    A("  s_and_saveexec_b64 s[36:37], vcc")
    A("  s_cbranch_execz KB_NOSD")
    A("  global_load_dwordx4 v[16:19], v5, s[26:27] offset:16")
    A("KB_NOSD:")
    A("  s_mov_b64 exec, s[36:37]")
    for i in range(4):
        A(f"  v_mov_b32 v{20+i}, 0")
        A(f"  v_mov_b32 v{24+i}, -1")
    A(f"  v_add_u32 v5, {KB_P}, v4")
    for k in range(5):
        A(f"  ds_write_b128 v5, v[20:23] offset:{k*8192}")
    A("  v_cmp_gt_u32 vcc, 160, v0")
    A("  s_and_saveexec_b64 s[34:35], vcc")
    A(f"  ds_write_b128 v5, v[20:23] offset:{5*8192}")
    A("  s_mov_b64 exec, s[34:35]")
    A(f"  v_add_u32 v5, {KB_EL}, v4")
    A("  v_cmp_gt_u32 vcc, 328, v0")
    A("  s_and_saveexec_b64 s[34:35], vcc")
    A("  ds_write_b128 v5, v[24:27]")
    A("  s_mov_b64 exec, s[34:35]")
    A(f"  v_add_u32 v5, {KB_CNT}, v4")
    A("  v_cmp_gt_u32 vcc, 4, v0")
    A("  s_and_saveexec_b64 s[34:35], vcc")
    A("  ds_write_b128 v5, v[20:23]")
    A("  s_mov_b64 exec, s[34:35]")
    A("  s_and_b32 s60, s28, 1")
    A("  s_lshl_b32 s60, s60, 8")
    A(f"  v_lshlrev_b32 v{V_RC}, 4, v2")
    A(f"  v_add_u32 v{V_RC}, s60, v{V_RC}")
    A(f"  v_lshlrev_b32 v{V_G32}, 5, v3")
    A(f"  v_mul_u32_u24 v{V_PL}, {PS}, v2")
    A(f"  v_lshl_add_u32 v{V_PL}, v3, 4, v{V_PL}")
    A(f"  v_mul_u32_u24 v{V_A2L}, {A2S}, v3")
    A(f"  v_add_u32 v{V_A2L}, v{V_A2L}, v{V_RC}")
    A("  s_mov_b32 s60, 0x3f803f80")
    for i in range(4):
        A(f"  v_mov_b32 v{ONES+i}, s60")
    for i in range(36):
        A(f"  v_mov_b32 v{ACC+i}, 0")
    A("  s_waitcnt vmcnt(0)")
    A(f"  v_add_u32 v5, {KB_SD}, v4")
    A("  v_cmp_gt_u32 vcc, 40, v0")
    A("  s_and_saveexec_b64 s[34:35], vcc")
    A("  ds_write_b128 v5, v[16:19]")
    A("  s_mov_b64 exec, s[34:35]")
    A("  s_waitcnt lgkmcnt(0)")
    A("  s_barrier")
    A("  s_mov_b64 s[34:35], 0")
    A("  v_mov_b32 v6, 1")
    for e in range(8):
        A(f"  v_cmp_gt_u32 s[{36+2*e}:{37+2*e}], s33, v{8+e}")
        A(f"  v_cmp_eq_u32 vcc, s33, v{8+e}")
        A(f"  v_lshrrev_b32 v{16+e}, 18, v{8+e}")
        A("  s_or_b64 s[34:35], s[34:35], vcc")
        A(f"  v_lshlrev_b32 v7, 2, v{16+e}")
        A(f"  v_add_u32 v7, {KB_CNT}, v7")
        A(f"  s_mov_b64 exec, s[{36+2*e}:{37+2*e}]")
        A(f"  ds_add_rtn_u32 v{24+e}, v7, v6")
        A("  s_mov_b64 exec, -1")
    A("  s_waitcnt lgkmcnt(0)")
    for e in range(8):
        A(f"  s_mov_b64 exec, s[{36+2*e}:{37+2*e}]")
        A(f"  v_cmp_lt_u32 vcc, 127, v{24+e}")
        A(f"  v_min_u32 v{24+e}, 127, v{24+e}")
        A(f"  v_lshlrev_b32 v7, 9, v{16+e}")
        A("  s_or_b64 s[34:35], s[34:35], vcc")
        A(f"  v_lshl_add_u32 v7, v{24+e}, 2, v7")
        A(f"  v_add_u32 v7, {KB_EL}, v7")
        A(f"  ds_write_b32 v7, v{8+e}")
    A("  s_mov_b64 exec, -1")
    A("  s_cmp_eq_u64 s[34:35], 0")
    A("  s_cbranch_scc1 KB_NOFLAG")
    A(f"  v_mov_b32 v7, {KB_FLAG}")
    A("  ds_write_b32 v7, v6")
    A("KB_NOFLAG:")
    A("  s_waitcnt lgkmcnt(0)")
    A("  s_barrier")
    A(f"  v_mov_b32 v7, {KB_CNT}")
    A("  ds_read_b128 v[16:19], v7")
    A("  ds_read_b128 v[20:23], v7 offset:16")
    A("  ds_read_b128 v[24:27], v7 offset:32")
    A("  ds_read_b32 v28, v7 offset:48")
    A("  v_lshlrev_b32 v5, 2, v0")
    A(f"  v_add_u32 v5, {KB_EL}, v5")
    A("  ds_read_b32 v8, v5")
    A("  ds_read_b32 v9, v5 offset:2048")
    A("  ds_read_b32 v10, v5 offset:4096")
    A("  s_lshr_b32 s59, s28, 1")
    A("  s_mov_b32 s52, 0")
    A("  s_mov_b32 s53, 0")
    A("  s_mov_b32 s54, 0")
    A("  s_mov_b32 s55, 0")
    A("  s_cmp_lt_u32 s28, 4")
    A("  s_cselect_b32 s58, 3, 2")
    A("  s_waitcnt lgkmcnt(0)")
    A("  v_readfirstlane_b32 s60, v28")
    A("  s_cmp_lg_u32 s60, 0")
    A("  s_cbranch_scc1 KB_FALLBACK")
    for i in range(10):
        A(f"  v_readfirstlane_b32 s{70+i}, v{16+i}")
    A("  s_mov_b32 s62, s70")
    A("  s_mov_b32 s63, s74")
    A("  s_mov_b32 s64, s78")
    for wh in range(1, 4):
        A(f"  s_cmp_eq_u32 s59, {wh}")
        A(f"  s_cselect_b32 s62, s{70+wh}, s62")
        A(f"  s_cselect_b32 s63, s{74+wh}, s63")
        if wh < 2:
            A(f"  s_cselect_b32 s64, s{78+wh}, s64")
    for r in (62, 63, 64):
        A(f"  s_add_u32 s{r}, s{r}, 31")
        A(f"  s_lshr_b32 s{r}, s{r}, 5")
        A(f"  s_max_u32 s{r}, s{r}, 1")
    A("  s_cmp_lt_u32 s28, 4")
    A("  s_cselect_b32 s64, s64, 0")
    A("  s_add_u32 s57, s62, s63")
    A("  s_add_u32 s57, s57, s64")
    A("  v_cmp_gt_u32 vcc, 256, v0")
    A("  v_mov_b32 v7, -1")
    A("  s_nop 0")
    A("  v_cndmask_b32 v10, v7, v10, vcc")
    for rd in range(3):
        A(f"  v_cmp_ne_u32 s[{36+2*rd}:{37+2*rd}], -1, v{8+rd}")
        A(f"  v_and_b32 v7, 0xffff, v{8+rd}")
        A(f"  v_lshlrev_b32 v{12+rd}, 5, v7")
    for rd in range(3):
        A(f"  s_mov_b64 exec, s[{36+2*rd}:{37+2*rd}]")
        A(f"  global_load_dwordx4 {vr(16+4*rd,4)}, v{12+rd}, s[26:27]")
        A(f"  v_lshrrev_b32 v7, 16, v{8+rd}")
        A(f"  v_lshlrev_b32 v7, 4, v7")
        A(f"  v_add_u32 v7, {KB_SD}, v7")
        A(f"  ds_read_b128 {vr(28+4*rd,4)}, v7")
    A("  s_mov_b64 exec, -1")
    for st in range(D):
        issue_a()
        A("  s_waitcnt lgkmcnt(0)")
        issue_b(st)
    issue_a()
    A(f"  s_waitcnt vmcnt({8*D})")
    A("  s_mov_b32 s60, 0x3e4ccccd")
    for rd in range(3):
        S = 16 + 4 * rd
        Dd = 28 + 4 * rd
        A(f"  s_mov_b64 exec, s[{36+2*rd}:{37+2*rd}]")
        for h in range(4):
            A(f"  v_add_f32 v{S+h}, v{S+h}, v{Dd+h}")
        for h in range(4):
            A(f"  v_mul_f32 v{Dd+h}, s60, v{S+h}")
        for h in range(4):
            A(f"  v_max_f32 v{S+h}, v{S+h}, v{Dd+h}")
        for h in range(4):
            A(f"  v_exp_f32 v{S+h}, v{S+h}")
        A(f"  v_add_u32 v6, {512*rd}, v0")
        A("  v_lshrrev_b32 v7, 7, v6")
        A(f"  v_mul_u32_u24 v7, {PG}, v7")
        A("  v_and_b32 v6, 127, v6")
        A("  v_lshl_add_u32 v7, v6, 1, v7")
        A(f"  v_bfe_u32 v6, v{8+rd}, 16, 2")
        A(f"  v_mul_u32_u24 v6, {4*PS}, v6")
        A("  v_add_u32 v7, v7, v6")
        A(f"  v_add_u32 v7, {KB_P}, v7")
        A(f"  v_cvt_pk_bf16_f32 v{Dd}, v{S}, v{S+1}")
        A(f"  v_cvt_pk_bf16_f32 v{Dd+1}, v{S+2}, v{S+3}")
        A(f"  ds_write_b16 v7, v{Dd}")
        A(f"  ds_write_b16_d16_hi v7, v{Dd} offset:{PS}")
        A(f"  ds_write_b16 v7, v{Dd+1} offset:{2*PS}")
        A(f"  ds_write_b16_d16_hi v7, v{Dd+1} offset:{3*PS}")
    A("  s_mov_b64 exec, -1")
    A("  s_waitcnt lgkmcnt(0)")
    A("  s_barrier")
    A("  s_mov_b32 s56, 0")
    A("KB_LOOP:")
    for st in range(D):
        A("  s_lshl_b32 s60, s54, 2")
        A("  s_add_u32 s60, s60, s59")
        A(f"  s_mul_i32 s60, s60, {PG}")
        A("  s_lshl_b32 s61, s55, 6")
        A("  s_add_u32 s60, s60, s61")
        A(f"  s_add_u32 s60, s60, {KB_P}")
        A(f"  v_add_u32 v{V_TMP2}, s60, v{V_PL}")
        A(f"  ds_read_b128 {vr(PF,4)}, v{V_TMP2}")
        A(f"  s_waitcnt vmcnt({8*(D-1)})")
        A("  s_waitcnt lgkmcnt(0)")
        consume(st)
        issue_b(st)
        issue_a()
        A("  s_cmp_eq_u32 s54, 0")
        A("  s_cselect_b32 s61, s62, s63")
        A("  s_cmp_eq_u32 s54, 2")
        A("  s_cselect_b32 s61, s64, s61")
        A("  s_add_u32 s55, s55, 1")
        A("  s_cmp_lt_u32 s55, s61")
        A(f"  s_cbranch_scc1 KB_NOFIN{st}")
        finalize()
        A("  s_mov_b32 s55, 0")
        A("  s_add_u32 s54, s54, 1")
        A(f"KB_NOFIN{st}:")
        A("  s_add_u32 s56, s56, 1")
        A("  s_cmp_ge_u32 s56, s57")
        A("  s_cbranch_scc1 KB_GEMM")
    A("  s_branch KB_LOOP")
    A("KB_FALLBACK:")
    gen_fallback()
    A("KB_GEMM:")
    A("  s_waitcnt vmcnt(0) lgkmcnt(0)")
    A("  s_barrier")
    gen_gemm()
    A("KB_END:")
    A("  s_endpgm")

def gen_fallback():
    A("  s_mov_b32 s62, 0")
    A("  v_lshlrev_b32 v48, 3, v1")
    A("  v_lshlrev_b32 v49, 2, v1")
    A("  s_mov_b32 s66, 0x3e4ccccd")
    A("  s_mov_b32 s67, 0xffff0000")
    A("KF_NODE:")
    A("  s_mul_i32 s63, s28, 5")
    A("  s_add_u32 s63, s63, s62")
    A("  s_add_u32 s64, s63, s29")
    for i in range(20):
        A(f"  v_mov_b32 v{16+i}, 0")
    A("  s_lshl_b32 s60, s63, 4")
    A(f"  s_add_u32 s60, s60, {KB_SD}")
    A("  v_mov_b32 v7, s60")
    A("  ds_read_b128 v[36:39], v7")
    A("  s_mov_b32 s65, 0")
    A("KF_CHUNK:")
    A("  v_add_u32 v50, s65, v49")
    A("  global_load_dword v40, v50, s[8:9]")
    A("  global_load_dword v41, v50, s[6:7]")
    A("  s_waitcnt vmcnt(0) lgkmcnt(0)")
    A("  v_cmp_eq_u32 s[68:69], s64, v40")
    A("  s_nop 1")
    A("KF_EDGE:")
    A("  s_cmp_eq_u64 s[68:69], 0")
    A("  s_cbranch_scc1 KF_NEXT")
    A("  s_ff1_i32_b64 s60, s[68:69]")
    A("  s_bitset0_b64 s[68:69], s60")
    A("  v_readlane_b32 s61, v41, s60")
    A("  s_nop 3")
    A("  s_lshl_b32 s60, s61, 9")
    A("  v_add_u32 v50, s60, v48")
    A("  buffer_load_dwordx2 v[42:43], v50, s[16:19], 0 offen")
    A("  s_lshl_b32 s60, s61, 5")
    A("  v_mov_b32 v51, s60")
    A("  global_load_dwordx4 v[44:47], v51, s[26:27]")
    A("  s_waitcnt vmcnt(0)")
    for h in range(4):
        A(f"  v_add_f32 v{44+h}, v{44+h}, v{36+h}")
        A(f"  v_mul_f32 v52, s66, v{44+h}")
        A(f"  v_max_f32 v{44+h}, v{44+h}, v52")
        A(f"  v_exp_f32 v{44+h}, v{44+h}")
    A("  s_nop 0")
    A("  v_cvt_pk_bf16_f32 v52, v44, v45")
    A("  v_cvt_pk_bf16_f32 v53, v46, v47")
    A("  v_lshlrev_b32 v44, 16, v52")
    A("  v_and_b32 v45, s67, v52")
    A("  v_lshlrev_b32 v46, 16, v53")
    A("  v_and_b32 v47, s67, v53")
    A("  v_lshlrev_b32 v52, 16, v42")
    A("  v_and_b32 v53, s67, v42")
    A("  v_lshlrev_b32 v54, 16, v43")
    A("  v_and_b32 v55, s67, v43")
    for h in range(4):
        A(f"  v_add_f32 v{32+h}, v{32+h}, v{44+h}")
        for f in range(4):
            A(f"  v_fma_f32 v{16+4*h+f}, v{44+h}, v{52+f}, v{16+4*h+f}")
    A("  s_branch KF_EDGE")
    A("KF_NEXT:")
    A("  s_add_u32 s65, s65, 256")
    A(f"  s_cmp_lt_u32 s65, {E*4}")
    A("  s_cbranch_scc1 KF_CHUNK")
    A("  s_mov_b32 s61, 0x3089705f")
    A(f"  s_mul_i32 s60, s63, {A2S}")
    A("  v_add_u32 v50, s60, v48")
    for h in range(4):
        A(f"  v_add_f32 v{32+h}, s61, v{32+h}")
        A(f"  v_rcp_f32 v{32+h}, v{32+h}")
        A("  s_nop 0")
        A(f"  v_mul_f32 v{32+h}, 0.25, v{32+h}")
        for f in range(4):
            A(f"  v_mul_f32 v{16+4*h+f}, v{16+4*h+f}, v{32+h}")
        A(f"  v_cvt_pk_bf16_f32 v52, v{16+4*h}, v{17+4*h}")
        A(f"  v_cvt_pk_bf16_f32 v53, v{18+4*h}, v{19+4*h}")
        A(f"  ds_write_b64 v50, v[52:53] offset:{h*512}")
    A("  s_add_u32 s62, s62, 1")
    A("  s_cmp_lt_u32 s62, 5")
    A("  s_cbranch_scc1 KF_NODE")

DW = 8
WR = 64
AF = 128
GACC = 160

def gen_gemm():
    A("  v_lshlrev_b32 v4, 4, v1")
    A(f"  v_mul_u32_u24 v5, {A2S}, v2")
    A("  v_lshl_add_u32 v5, v3, 4, v5")
    A("  s_and_b32 s60, s2, 31")
    def koff(ks, sreg_w, sreg_a):
        A(f"  s_add_u32 s61, s60, {ks}")
        A("  s_and_b32 s61, s61, 31")
        if sreg_w is not None:
            A(f"  s_lshl_b32 s{sreg_w}, s61, 11")
        if sreg_a is not None:
            A(f"  s_lshl_b32 s{sreg_a}, s61, 6")
    def wload(ks):
        slot = ks % DW
        koff(ks, 62, None)
        A(f"  buffer_load_dwordx4 {vr(WR+8*slot,4)}, v4, s[20:23], s62 offen")
        A(f"  buffer_load_dwordx4 {vr(WR+8*slot+4,4)}, v4, s[20:23], s62 offen offset:1024")
    def aload(ks):
        b = AF + 12 * (ks & 1)
        koff(ks, None, 63)
        A("  v_add_u32 v6, s63, v5")
        A(f"  v_add_u32 v7, {32*A2S}, v6")
        A(f"  ds_read_b128 {vr(b,4)}, v6")
        A(f"  ds_read_b128 {vr(b+4,4)}, v6 offset:{16*A2S}")
        A(f"  ds_read_b128 {vr(b+8,4)}, v7")
    for ks in range(DW):
        wload(ks)
    aload(0)
    for ks in range(32):
        if ks + 1 < 32:
            aload(ks + 1)
        rem = min(DW - 1, 31 - ks)
        A(f"  s_waitcnt vmcnt({2*rem})")
        A(f"  s_waitcnt lgkmcnt({3 if ks+1<32 else 0})")
        slot = ks % DW
        b = AF + 12 * (ks & 1)
        for mt in range(3):
            for nt in range(2):
                a = GACC + 4 * (2 * mt + nt)
                c = "0" if ks == 0 else vr(a, 4)
                A(f"  v_mfma_f32_16x16x32_bf16 {vr(a,4)}, {vr(WR+8*slot+4*nt,4)}, {vr(b+4*mt,4)}, {c}")
        if ks + DW < 32:
            wload(ks + DW)
    A("  v_add_u32 v6, s29, v2")
    A("  v_lshlrev_b32 v6, 9, v6")
    A("  v_lshl_add_u32 v6, v3, 4, v6")
    A("  s_lshl_b32 s60, s28, 6")
    A("  v_add_u32 v6, s60, v6")
    A("  v_add_u32 v7, 0x2000, v6")
    A("  v_add_u32 v8, 0x4000, v6")
    A("  v_cmp_gt_u32 vcc, 8, v2")
    A("  s_nop 4")
    for mt in range(3):
        a = GACC + 8 * mt
        o = 12 + 4 * mt
        A(f"  v_cvt_pk_bf16_f32 v{o}, v{a}, v{a+1}")
        A(f"  v_cvt_pk_bf16_f32 v{o+1}, v{a+2}, v{a+3}")
        A(f"  v_cvt_pk_bf16_f32 v{o+2}, v{a+4}, v{a+5}")
        A(f"  v_cvt_pk_bf16_f32 v{o+3}, v{a+6}, v{a+7}")
        if mt == 2:
            A("  s_and_saveexec_b64 s[34:35], vcc")
        A(f"  global_store_dwordx4 v{6+mt}, {vr(o,4)}, s[12:13]")

def desc(name, vgpr, sgpr):
    acc = (vgpr + 3) // 4 * 4
    A(f".amdhsa_kernel {name}")
    A(f"  .amdhsa_next_free_vgpr {vgpr}")
    A(f"  .amdhsa_next_free_sgpr {sgpr}")
    A(f"  .amdhsa_accum_offset {acc}")
    A("  .amdhsa_group_segment_fixed_size 0")
    A("  .amdhsa_kernarg_size 72")
    A("  .amdhsa_user_sgpr_count 2")
    A("  .amdhsa_user_sgpr_kernarg_segment_ptr 1")
    A("  .amdhsa_system_sgpr_workgroup_id_x 1")
    A(".end_amdhsa_kernel")

def main():
    A(HEADER.format(lds_a=KA_LDS, lds_b=KB_LDS).rstrip("\n"))
    gen_prep()
    gen_main()
    A('.section .rodata,"a"')
    A(".p2align 6")
    desc("gat_prep_kernel", 168, 96)
    A(".p2align 6")
    desc("gat_main_kernel", 256, 96)
    txt = "\n".join(x for x in out if x is not None) + "\n"
    path = sys.argv[1] if len(sys.argv) > 1 else "standalone__graph_attention_gat__graph.s"
    open(path, "w").write(txt)

main()
```

```python
import sys, os

N = 10000
E = 160000
CELL_BYTES = 16000
STAB_OFF = 4194304
WF_OFF = 5242880
BF_OFF = 6291456
XBYTES = N * 512

DIAG = os.environ.get("DIAG") == "1"
STAMP_OFF = 8 << 20
out = []
def A(s=""):
    out.append(s)
def STAMP(i):
    if not DIAG: return
    A("  s_memtime s[98:99]")
    A("  s_waitcnt lgkmcnt(0)")
    A(f"  s_mov_b32 s{82+i}, s98")
def RSTAMP(i):
    if not DIAG: return
    A("  s_memrealtime s[98:99]")
    A("  s_waitcnt lgkmcnt(0)")
    A(f"  s_mov_b32 s{82+i}, s98")
def STAMP_OUT(wsreg, wavereg, koff, v0=4, v1=5):
    if not DIAG: return
    A("  s_mov_b64 exec, 1")
    A("  s_lshl_b32 s98, s2, 4")
    A(f"  s_add_u32 s98, s98, s{wavereg}")
    A("  s_lshl_b32 s98, s98, 6")
    A(f"  s_add_u32 s98, s98, {STAMP_OFF + koff}")
    A(f"  v_mov_b32 v{v0}, s98")
    for i in range(16):
        A(f"  v_mov_b32 v{v1}, s{82+i}")
        A(f"  global_store_dword v{v0}, v{v1}, s[{wsreg}:{wsreg+1}] offset:{4*i}")
        A("  s_nop 1")

def vr(b, n):
    return f"v[{b}:{b+n-1}]"

HEADER = """; GAT: out[n] = mean_h sum_e alpha[e,h] * (x[src e] @ W_h)  computed as  (sum_e alpha x[src e]) @ W
; @launch kernel=gat_prep_kernel grid=(256,1,1) block=(640,1,1) lds={lds_a}
; @launch kernel=gat_main_kernel grid=(250,1,1) block=(512,1,1) lds={lds_b}
.amdgcn_target "amdgcn-amd-amdhsa--gfx950"
.text
"""

KA_CELLS = 0
KA_CNT = 16000
KA_LDS = 17024

def gen_prep():
    A(".globl gat_prep_kernel")
    A(".p2align 8")
    A(".type gat_prep_kernel,@function")
    A("gat_prep_kernel:")
    A("  s_cmp_ge_u32 s2, 256")
    A("  s_cbranch_scc1 KA_END")
    RSTAMP(14); STAMP(0)
    A("  s_load_dwordx8 s[4:11], s[0:1], 0")
    A("  s_load_dwordx4 s[12:15], s[0:1], 32")
    A("  s_load_dwordx2 s[16:17], s[0:1], 64")
    A("  v_lshrrev_b32 v6, 6, v0")
    A("  v_and_b32 v1, 63, v0")
    A("  v_and_b32 v2, 15, v1")
    A("  v_lshrrev_b32 v3, 4, v1")
    A("  v_readfirstlane_b32 s24, v6")
    A("  s_lshr_b32 s25, s2, 4")
    A("  s_and_b32 s26, s2, 15")
    A("  v_mov_b32 v4, 0")
    A("  v_mov_b32 v5, 0")
    A("  s_waitcnt lgkmcnt(0)")
    A("  s_cmp_ge_u32 s2, 250")
    A("  s_cbranch_scc1 KA_NOEDGE")
    A("  s_mul_i32 s27, s2, 2560")
    A("  v_lshl_add_u32 v6, v0, 2, s27")
    A("  global_load_dword v4, v6, s[8:9]")
    A("  global_load_dword v5, v6, s[6:7]")
    A("  s_mul_i32 s27, s2, 640")
    A(f"  s_add_u32 s27, s27, {STAB_OFF}")
    A("  v_lshl_add_u32 v6, v0, 4, s27")
    for i in range(4):
        A(f"  v_mov_b32 v{80+i}, -1")
    A("  v_cmp_gt_u32 vcc, 40, v0")
    A("  s_and_saveexec_b64 s[32:33], vcc")
    A("  s_cbranch_execz KA_NORST")
    A("  global_store_dwordx4 v6, v[80:83], s[16:17]")
    A("KA_NORST:")
    A("  s_mov_b64 exec, s[32:33]")
    A("KA_NOEDGE:")
    A("  s_mov_b32 s36, 0")
    A("  s_cmp_ge_u32 s24, 8")
    A("  s_cbranch_scc1 KA_SHUF_LOAD")
    A("  s_cmp_lg_u32 s24, 0")
    A("  s_cbranch_scc1 KA_INIT")
    A("  s_cmp_ge_u32 s2, 64")
    A("  s_cbranch_scc1 KA_INIT")
    A("  s_mov_b32 s36, 1")
    A("  v_mov_b32 v72, s12")
    A("  v_mov_b32 v73, s13")
    A("  v_mov_b32 v74, s14")
    A("  v_mov_b32 v75, s15")
    A("  v_cmp_eq_u32 vcc, 1, v2")
    A("  s_lshl_b32 s27, s25, 9")
    A("  v_lshlrev_b32 v76, 4, v3")
    A("  v_add_u32 v76, s27, v76")
    A("  v_cndmask_b32 v72, v72, v74, vcc")
    A("  v_cndmask_b32 v73, v73, v75, vcc")
    A("  v_add_co_u32 v72, vcc, v72, v76")
    A("  s_nop 1")
    A("  v_addc_co_u32 v73, vcc, 0, v73, vcc")
    for i in range(32):
        A(f"  v_mov_b32 v{40+i}, 0")
    A("  v_cmp_gt_u32 vcc, 2, v2")
    A("  s_and_saveexec_b64 s[32:33], vcc")
    for kk in range(8):
        A(f"  global_load_dwordx4 {vr(40+4*kk,4)}, v[72:73], off offset:{kk*64}")
    A("  s_mov_b64 exec, s[32:33]")
    A("  s_lshl_b32 s27, s2, 13")
    A("  v_lshlrev_b32 v76, 9, v2")
    A("  v_lshl_add_u32 v76, v3, 4, v76")
    A("  v_add_u32 v76, s27, v76")
    for kk in range(8):
        A(f"  global_load_dwordx4 {vr(8+4*kk,4)}, v76, s[10:11] offset:{kk*64}")
    A("  s_branch KA_INIT")
    A("KA_SHUF_LOAD:")
    A("  s_mov_b32 s36, 2")
    A("  s_lshr_b32 s27, s2, 5")
    A("  s_lshl_b32 s27, s27, 6")
    A("  s_and_b32 s34, s2, 31")
    A("  s_lshl_b32 s34, s34, 14")
    A("  s_add_u32 s27, s27, s34")
    A("  s_sub_u32 s34, s24, 8")
    A("  s_lshl_b32 s34, s34, 3")
    A("  s_add_u32 s27, s27, s34")
    A("  v_lshrrev_b32 v76, 2, v2")
    A("  v_lshlrev_b32 v76, 4, v76")
    A("  v_and_b32 v77, 3, v2")
    A("  v_lshl_add_u32 v76, v77, 1, v76")
    A("  v_lshl_add_u32 v76, v3, 12, v76")
    A("  v_add_u32 v76, s27, v76")
    for j in range(8):
        A(f"  global_load_ushort v{44+j}, v76, s[10:11] offset:{j*512}")
    A("KA_INIT:")
    for i in range(4):
        A(f"  v_mov_b32 v{80+i}, -1")
        A(f"  v_mov_b32 v{84+i}, 0")
    A("  v_lshlrev_b32 v79, 4, v0")
    A(f"  ds_write_b128 v79, v[80:83] offset:{KA_CELLS}")
    A("  v_cmp_gt_u32 vcc, 360, v0")
    A("  s_and_saveexec_b64 s[32:33], vcc")
    A(f"  ds_write_b128 v79, v[80:83] offset:{KA_CELLS+10240}")
    A("  s_mov_b64 exec, s[32:33]")
    A("  v_cmp_gt_u32 vcc, 64, v0")
    A("  s_and_saveexec_b64 s[32:33], vcc")
    A(f"  ds_write_b128 v79, v[84:87] offset:{KA_CNT}")
    A("  s_mov_b64 exec, s[32:33]")
    A("  s_waitcnt lgkmcnt(0)")
    A("  s_barrier")
    STAMP(1)
    A("  s_cmp_ge_u32 s2, 250")
    A("  s_cbranch_scc1 KA_NOPART")
    A("  s_cmp_eq_u32 s36, 1")
    A("  s_cbranch_scc1 KA_PW1")
    A("  s_cmp_eq_u32 s36, 2")
    A("  s_cbranch_scc1 KA_PW2")
    A("  s_waitcnt vmcnt(0)")
    A("  s_branch KA_PW3")
    A("KA_PW1:")
    A("  s_waitcnt vmcnt(16)")
    A("  s_branch KA_PW3")
    A("KA_PW2:")
    A("  s_waitcnt vmcnt(8)")
    A("KA_PW3:")
    A("  v_mul_u32_u24 v6, 52429, v4")
    A("  v_lshrrev_b32 v6, 21, v6")
    A("  v_mul_u32_u24 v7, 40, v6")
    A("  v_sub_u32 v7, v4, v7")
    A("  v_lshl_or_b32 v7, v7, 16, v5")
    A("  v_lshlrev_b32 v88, 2, v6")
    A("  v_mov_b32 v89, 1")
    A(f"  ds_add_rtn_u32 v90, v88, v89 offset:{KA_CNT}")
    A("  v_mov_b32 v91, 0xfffffffe")
    A("  v_lshlrev_b32 v88, 6, v6")
    A("  s_waitcnt lgkmcnt(0)")
    A("  v_cmp_gt_u32 vcc, 15, v90")
    A("  v_min_u32 v90, 15, v90")
    A("  v_lshl_add_u32 v88, v90, 2, v88")
    A("  v_cndmask_b32 v7, v91, v7, vcc")
    A(f"  ds_write_b32 v88, v7 offset:{KA_CELLS}")
    A("KA_NOPART:")
    A("  s_waitcnt lgkmcnt(0)")
    A("  s_barrier")
    STAMP(2)
    A("  s_cmp_ge_u32 s2, 250")
    A("  s_cbranch_scc1 KA_NOCOPY")
    A(f"  ds_read_b128 v[80:83], v79 offset:{KA_CELLS}")
    A(f"  ds_read_b128 v[84:87], v79 offset:{KA_CELLS+10240}")
    A("  v_lshrrev_b32 v88, 2, v0")
    A(f"  v_mul_u32_u24 v88, {CELL_BYTES}, v88")
    A("  v_and_b32 v89, 3, v0")
    A("  v_lshl_add_u32 v88, v89, 4, v88")
    A("  s_lshl_b32 s27, s2, 6")
    A("  v_add_u32 v88, s27, v88")
    A(f"  v_add_u32 v89, {160*CELL_BYTES}, v88")
    A("  s_waitcnt lgkmcnt(0)")
    A("  global_store_dwordx4 v88, v[80:83], s[16:17]")
    A("  v_cmp_gt_u32 vcc, 360, v0")
    A("  s_and_saveexec_b64 s[32:33], vcc")
    A("  s_cbranch_execz KA_CP2")
    A("  global_store_dwordx4 v89, v[84:87], s[16:17]")
    A("KA_CP2:")
    A("  s_mov_b64 exec, s[32:33]")
    A("KA_NOCOPY:")
    STAMP(3)
    A("  s_cmp_eq_u32 s36, 0")
    A("  s_cbranch_scc1 KA_FIN")
    A("  s_cmp_eq_u32 s36, 2")
    A("  s_cbranch_scc1 KA_SHUF_ST")
    A("  s_waitcnt vmcnt(0)")
    for kk in range(8):
        c = "0" if kk == 0 else "v[92:95]"
        A(f"  v_mfma_f32_16x16x32_bf16 v[92:95], {vr(8+4*kk,4)}, {vr(40+4*kk,4)}, {c}")
    A("  s_lshr_b32 s27, s26, 1")
    A("  s_lshl_b32 s27, s27, 10")
    A("  s_and_b32 s34, s26, 1")
    A("  s_lshl_b32 s34, s34, 9")
    A("  s_add_u32 s27, s27, s34")
    A("  s_lshl_b32 s34, s25, 6")
    A("  s_add_u32 s27, s27, s34")
    A(f"  s_add_u32 s27, s27, {BF_OFF}")
    A("  v_lshrrev_b32 v88, 1, v3")
    A("  v_lshlrev_b32 v88, 8, v88")
    A("  v_lshl_add_u32 v88, v2, 5, v88")
    A("  v_and_b32 v89, 1, v3")
    A("  v_lshl_add_u32 v88, v89, 3, v88")
    A("  v_add_u32 v88, s27, v88")
    A("  s_mov_b32 s34, 0x3fb8aa3b")
    A("  s_mov_b32 s35, 0xffff0000")
    A("  v_cmp_gt_u32 vcc, 2, v2")
    A("  s_nop 1")
    b = 92
    for r in range(4):
        A(f"  v_mul_f32 v{b+r}, s34, v{b+r}")
    A(f"  v_cvt_pk_bf16_f32 v80, v{b}, v{b+1}")
    A(f"  v_cvt_pk_bf16_f32 v81, v{b+2}, v{b+3}")
    A("  v_lshlrev_b32 v82, 16, v80")
    A("  v_and_b32 v83, s35, v80")
    A("  v_lshlrev_b32 v84, 16, v81")
    A("  v_and_b32 v85, s35, v81")
    for r in range(4):
        A(f"  v_sub_f32 v{82+r}, v{b+r}, v{82+r}")
    A("  v_cvt_pk_bf16_f32 v82, v82, v83")
    A("  v_cvt_pk_bf16_f32 v83, v84, v85")
    A("  s_and_saveexec_b64 s[32:33], vcc")
    A("  global_store_dwordx2 v88, v[80:81], s[16:17]")
    A("  global_store_dwordx2 v88, v[82:83], s[16:17] offset:16")
    A("  s_mov_b64 exec, s[32:33]")
    A("  s_branch KA_FIN")
    A("KA_SHUF_ST:")
    A("  s_waitcnt vmcnt(0)")
    for t in range(4):
        A(f"  v_lshl_or_b32 v{40+t}, v{45+2*t}, 16, v{44+2*t}")
    A("  s_lshl_b32 s27, s2, 11")
    A(f"  s_add_u32 s27, s27, {WF_OFF - 512*16}")
    A("  v_lshl_add_u32 v88, v0, 4, s27")
    A("  global_store_dwordx4 v88, v[40:43], s[16:17]")
    A("KA_FIN:")
    A("  s_cmp_ge_u32 s2, 250")
    A("  s_cbranch_scc1 KA_NOWARM")
    A("  s_mul_i32 s27, s2, 20480")
    A("  s_lshl_b32 s34, s24, 11")
    A("  s_add_u32 s27, s27, s34")
    A("  v_lshl_add_u32 v88, v1, 4, s27")
    A("  global_load_dwordx4 v[8:11], v88, s[4:5]")
    A("  global_load_dwordx4 v[12:15], v88, s[4:5] offset:1024")
    A("KA_NOWARM:")
    STAMP(4); RSTAMP(15); STAMP_OUT(16, 24, 0)
    A("KA_END:")
    A("  s_endpgm")

A2S = 2064
KB_A2 = 0
KB_P = 40 * A2S
PS = 272
PG = 16 * PS
KB_EL = KB_P + 10 * PG
KB_DUMMY = KB_EL + 5120
KB_SD = KB_DUMMY + 128
KB_CNT = KB_SD + 1536
KB_FLAG = KB_CNT + 48
KB_DONE = KB_CNT + 52
KB_LDS = KB_CNT + 64

D = 4
RB = 40
ACC = 168
DEN = 200
T0 = 204
PF = 220
ENT = 224
AD = 232
ONES = 240
V_RC = 244
V_G32 = 245
V_PL = 246
V_A2L = 247
V_TMP = 248
V_TMP2 = 249
V_ONE = 250

def item_decode(idx_reg, grp_out, hf_out):
    A(f"  s_lshl_b32 s{grp_out}, s{idx_reg}, 2")
    A(f"  s_add_u32 s{grp_out}, s{grp_out}, s28")
    A(f"  s_cmp_ge_u32 s{grp_out}, 10")
    A(f"  s_cselect_b32 s{hf_out}, 1, 0")
    A(f"  s_cselect_b32 s61, 10, 0")
    A(f"  s_sub_u32 s{grp_out}, s{grp_out}, s61")

def issue_a():
    item_decode(52, 60, 63)
    A("  s_lshl_b32 s64, s63, 8")
    A("  s_lshl_b32 s60, s60, 9")
    A("  s_lshl_b32 s61, s53, 7")
    A("  s_add_u32 s60, s60, s61")
    A(f"  s_add_u32 s60, s60, {KB_EL}")
    A("  s_cmp_ge_u32 s52, 5")
    A(f"  s_cselect_b32 s60, {KB_DUMMY}, s60")
    A(f"  v_add_u32 v{V_TMP}, s60, v{V_G32}")
    A(f"  ds_read_b128 {vr(ENT,4)}, v{V_TMP}")
    A(f"  ds_read_b128 {vr(ENT+4,4)}, v{V_TMP} offset:16")
    A("  s_lshl_b32 s61, s52, 2")
    A("  s_lshr_b32 s61, s62, s61")
    A("  s_and_b32 s61, s61, 15")
    A("  s_add_u32 s53, s53, 1")
    A("  s_cmp_ge_u32 s53, s61")
    A("  s_cselect_b32 s53, 0, s53")
    A("  s_addc_u32 s52, s52, 0")
    A("  s_min_u32 s52, s52, 6")

def issue_b(st):
    for i in range(8):
        A(f"  v_mad_u32_u16 v{AD+i}, v{ENT+i}, s32, v{V_RC}")
    for i in range(8):
        A(f"  buffer_load_dwordx4 {vr(RB+32*st+4*i,4)}, v{AD+i}, s[16:19], s64 offen")

def perms(st, q, tb):
    R = lambda i: RB + 32 * st + 4 * i + q
    for t in range(4):
        A(f"  v_perm_b32 v{tb+t}, v{R(2*t+1)}, v{R(2*t)}, s30")
    for t in range(4):
        A(f"  v_perm_b32 v{tb+4+t}, v{R(2*t+1)}, v{R(2*t)}, s31")

def mf(q, tb):
    for u in range(2):
        a = ACC + 4 * (2 * q + u)
        A(f"  v_mfma_f32_16x16x32_bf16 {vr(a,4)}, {vr(PF,4)}, {vr(tb+4*u,4)}, {vr(a,4)}")

def consume(st):
    TA, TB = T0, T0 + 8
    perms(st, 0, TA)
    perms(st, 1, TB)
    mf(0, TA)
    perms(st, 2, TA)
    mf(1, TB)
    perms(st, 3, TB)
    mf(2, TA)
    A(f"  v_mfma_f32_16x16x32_bf16 {vr(DEN,4)}, {vr(PF,4)}, {vr(ONES,4)}, {vr(DEN,4)}")
    mf(3, TB)

def finalize():
    A("  s_nop 7")
    item_decode(54, 60, 65)
    A(f"  s_mul_i32 s60, s60, {4*A2S}")
    A("  s_lshl_b32 s61, s65, 8")
    A("  s_add_u32 s60, s60, s61")
    A(f"  v_add_u32 v{V_TMP2}, s60, v{V_A2L}")
    A("  s_mov_b32 s61, 0x3089705f")
    for r in range(4):
        A(f"  v_add_f32 v{DEN+r}, s61, v{DEN+r}")
    for r in range(4):
        A(f"  v_rcp_f32 v{DEN+r}, v{DEN+r}")
    A("  s_nop 0")
    for r in range(4):
        A(f"  v_mul_f32 v{DEN+r}, 0.25, v{DEN+r}")
    for r in range(4):
        for j in range(8):
            A(f"  v_mul_f32 v{ACC+4*j+r}, v{ACC+4*j+r}, v{DEN+r}")
        tb = T0 + 4 * (r & 3)
        for t in range(4):
            A(f"  v_cvt_pk_bf16_f32 v{tb+t}, v{ACC+4*(2*t)+r}, v{ACC+4*(2*t+1)+r}")
        A(f"  ds_write_b128 v{V_TMP2}, {vr(tb,4)} offset:{r*512}")
    A("  s_lshl_b32 s61, s65, 2")
    A(f"  s_add_u32 s61, s61, {KB_DONE}")
    A(f"  v_mov_b32 v{V_TMP2}, s61")
    for i in range(36):
        A(f"  v_mov_b32 v{ACC+i}, 0")
    A("  s_waitcnt lgkmcnt(0)")
    A("  s_mov_b64 exec, 1")
    A(f"  ds_add_u32 v{V_TMP2}, v{V_ONE}")
    A("  s_mov_b64 exec, -1")

def bfreg(kk):
    return 232 + 4 * kk if kk < 6 else 32 + 4 * (kk - 6)

def lds_spin(name, addr, target, vtmp, vtmp2):
    A(f"  v_mov_b32 v{vtmp}, {addr}")
    A(f"{name}:")
    A(f"  ds_read_b32 v{vtmp2}, v{vtmp}")
    A("  s_waitcnt lgkmcnt(0)")
    A(f"  v_readfirstlane_b32 s60, v{vtmp2}")
    A(f"  s_cmp_ge_u32 s60, {target}")
    A(f"  s_cbranch_scc1 {name}_D")
    A("  s_sleep 1")
    A(f"  s_branch {name}")
    A(f"{name}_D:")

def lds_signal(addr, vtmp, vone):
    A(f"  v_mov_b32 v{vtmp}, {addr}")
    A(f"  v_mov_b32 v{vone}, 1")
    A("  s_waitcnt lgkmcnt(0)")
    A("  s_mov_b64 exec, 1")
    A(f"  ds_add_u32 v{vtmp}, v{vone}")
    A("  s_mov_b64 exec, -1")

KB_SDF = KB_CNT + 40
KB_GS = KB_CNT + 44
WPRE = int(os.environ.get("WPRE", "0"))

def gen_main():
    A(".globl gat_main_kernel")
    A(".p2align 8")
    A(".type gat_main_kernel,@function")
    A("gat_main_kernel:")
    A("  s_cmp_ge_u32 s2, 250")
    A("  s_cbranch_scc1 KB_END")
    RSTAMP(14); STAMP(0)
    A("  s_load_dwordx4 s[4:7], s[0:1], 0")
    A("  s_load_dwordx2 s[8:9], s[0:1], 16")
    A("  s_load_dwordx2 s[12:13], s[0:1], 48")
    A("  s_load_dwordx2 s[14:15], s[0:1], 64")
    A("  v_lshrrev_b32 v6, 6, v0")
    A("  v_and_b32 v1, 63, v0")
    A("  v_and_b32 v2, 15, v1")
    A("  v_lshrrev_b32 v3, 4, v1")
    A("  v_readfirstlane_b32 s28, v6")
    A("  s_mul_i32 s29, s2, 40")
    A("  s_mov_b32 s30, 0x05040100")
    A("  s_mov_b32 s31, 0x07060302")
    A("  s_movk_i32 s32, 0x200")
    A("  s_mov_b32 s33, 0xfffffffe")
    A("  s_and_b32 s66, s2, 15")
    A("  v_lshlrev_b32 v4, 4, v0")
    for i in range(4):
        A(f"  v_mov_b32 v{12+i}, -1")
    A("  s_sub_u32 s50, s28, 4")
    A("  s_waitcnt lgkmcnt(0)")
    A("  s_mov_b32 s16, s4")
    A("  s_and_b32 s17, s5, 0xffff")
    A(f"  s_mov_b32 s18, {XBYTES}")
    A("  s_mov_b32 s19, 0x20000")
    A("  s_cmp_ge_u32 s50, 3")
    A("  s_cbranch_scc1 KB_CELLS")
    A("  s_lshl_b32 s60, s50, 4")
    A("  s_add_u32 s60, s60, s29")
    A("  v_add_u32 v6, s60, v2")
    A("  v_lshlrev_b32 v6, 9, v6")
    A("  v_lshl_add_u32 v6, v3, 4, v6")
    A(f"  s_add_u32 s60, s14, {BF_OFF}")
    A("  s_addc_u32 s61, s15, 0")
    A("  v_lshlrev_b32 v7, 4, v1")
    A("  v_add_u32 v5, 0x1000, v7")
    for kk in range(8):
        A(f"  buffer_load_dwordx4 {vr(64+4*kk,4)}, v6, s[16:19], 0 offen offset:{kk*64}")
        A(f"  global_load_dwordx4 {vr(96+4*kk,4)}, v{7 if kk<4 else 5}, s[60:61] offset:{(kk&3)*1024}")
    A("KB_CELLS:")
    A(f"  s_mul_i32 s60, s2, {CELL_BYTES}")
    A("  s_add_u32 s24, s14, s60")
    A("  s_addc_u32 s25, s15, 0")
    A("  v_add_u32 v5, 0x2000, v4")
    A("  global_load_dwordx4 v[8:11], v4, s[24:25]")
    A("  v_cmp_gt_u32 vcc, 488, v0")
    A("  s_and_saveexec_b64 s[34:35], vcc")
    A("  global_load_dwordx4 v[12:15], v5, s[24:25]")
    A("  s_mov_b64 exec, s[34:35]")
    A(f"  s_add_u32 s26, s14, {STAB_OFF}")
    A("  s_addc_u32 s27, s15, 0")
    A("  s_and_b32 s60, s28, 3")
    A("  s_lshl_b32 s60, s60, 17")
    A(f"  s_add_u32 s60, s60, {WF_OFF}")
    A("  s_add_u32 s20, s14, s60")
    A("  s_addc_u32 s21, s15, 0")
    A("  s_and_b32 s21, s21, 0xffff")
    A("  s_mov_b32 s22, 131072")
    A("  s_mov_b32 s23, 0x20000")
    for i in range(4):
        A(f"  v_mov_b32 v{20+i}, 0")
        A(f"  v_mov_b32 v{24+i}, -1")
    A(f"  v_add_u32 v5, {KB_P}, v4")
    for k in range(5):
        A(f"  ds_write_b128 v5, v[20:23] offset:{k*8192}")
    A("  v_cmp_gt_u32 vcc, 160, v0")
    A("  s_and_saveexec_b64 s[34:35], vcc")
    A(f"  ds_write_b128 v5, v[20:23] offset:{5*8192}")
    A("  s_mov_b64 exec, s[34:35]")
    A(f"  v_add_u32 v5, {KB_EL}, v4")
    A("  v_cmp_gt_u32 vcc, 328, v0")
    A("  s_and_saveexec_b64 s[34:35], vcc")
    A("  ds_write_b128 v5, v[24:27]")
    A("  s_mov_b64 exec, s[34:35]")
    A(f"  v_add_u32 v5, {KB_CNT}, v4")
    A("  v_cmp_gt_u32 vcc, 4, v0")
    A("  s_and_saveexec_b64 s[34:35], vcc")
    A("  ds_write_b128 v5, v[20:23]")
    A("  s_mov_b64 exec, s[34:35]")
    A("  s_cmp_ge_u32 s50, 3")
    A("  s_cbranch_scc1 KB_NOS")
    for kk in range(8):
        A(f"  s_waitcnt vmcnt({16-2*kk})")
        c = "0" if kk == 0 else "v[28:31]"
        A(f"  v_mfma_f32_16x16x32_bf16 v[28:31], {vr(64+4*kk,4)}, {vr(96+4*kk,4)}, {c}")
    A("  s_lshl_b32 s60, s50, 9")
    A(f"  s_add_u32 s60, s60, {KB_SD}")
    A("  v_lshlrev_b32 v6, 7, v3")
    A("  v_bfe_u32 v7, v2, 1, 1")
    A("  v_lshl_add_u32 v6, v7, 4, v6")
    A("  v_lshrrev_b32 v7, 2, v2")
    A("  v_lshl_add_u32 v6, v7, 2, v6")
    A("  v_add_u32 v6, s60, v6")
    A("  v_lshl_add_u32 v16, v1, 5, s60")
    A("  s_lshl_b32 s61, s50, 4")
    A("  v_add_u32 v17, s61, v1")
    A("  v_add_u32 v18, s29, v17")
    A("  v_lshlrev_b32 v18, 4, v18")
    A("  v_and_b32 v7, 1, v2")
    A("  v_cmp_eq_u32 vcc, 0, v7")
    A("  v_cmp_gt_u32 s[42:43], 40, v17")
    for r in range(4):
        A(f"  v_add_f32_dpp v{32+r}, v{28+r}, v{28+r} quad_perm:[1,0,3,2] row_mask:0xf bank_mask:0xf")
    A("  s_and_saveexec_b64 s[34:35], vcc")
    for r in range(4):
        A(f"  ds_write_b32 v6, v{32+r} offset:{r*32}")
    A("  s_and_b64 exec, s[42:43], 0xffff")
    A("  s_waitcnt lgkmcnt(0)")
    A("  ds_read_b128 v[32:35], v16")
    A("  s_waitcnt lgkmcnt(0)")
    A("  global_store_dwordx4 v18, v[32:35], s[26:27] sc1")
    A("  s_mov_b64 exec, -1")
    A("  s_waitcnt vmcnt(1)")
    A("  s_branch KB_B0")
    A("KB_NOS:")
    A("  s_waitcnt vmcnt(0)")
    A("KB_B0:")
    A("  s_waitcnt lgkmcnt(0)")
    A("  s_barrier")
    STAMP(1)
    A("  s_mov_b64 s[34:35], 0")
    A("  v_mov_b32 v6, 1")
    for e in range(8):
        A(f"  v_cmp_gt_u32 s[{36+2*e}:{37+2*e}], s33, v{8+e}")
        A(f"  v_cmp_eq_u32 vcc, s33, v{8+e}")
        A(f"  v_lshrrev_b32 v{16+e}, 18, v{8+e}")
        A("  s_or_b64 s[34:35], s[34:35], vcc")
        A(f"  v_lshlrev_b32 v7, 2, v{16+e}")
        A(f"  v_add_u32 v7, {KB_CNT}, v7")
        A(f"  s_mov_b64 exec, s[{36+2*e}:{37+2*e}]")
        A(f"  ds_add_rtn_u32 v{24+e}, v7, v6")
        A("  s_mov_b64 exec, -1")
    A("  s_waitcnt lgkmcnt(0)")
    for e in range(8):
        A(f"  s_mov_b64 exec, s[{36+2*e}:{37+2*e}]")
        A(f"  v_cmp_lt_u32 vcc, 127, v{24+e}")
        A(f"  v_min_u32 v{24+e}, 127, v{24+e}")
        A(f"  v_lshlrev_b32 v7, 9, v{16+e}")
        A("  s_or_b64 s[34:35], s[34:35], vcc")
        A(f"  v_lshl_add_u32 v7, v{24+e}, 2, v7")
        A(f"  v_add_u32 v7, {KB_EL}, v7")
        A(f"  ds_write_b32 v7, v{8+e}")
    A("  s_mov_b64 exec, -1")
    A("  s_cmp_eq_u64 s[34:35], 0")
    A("  s_cbranch_scc1 KB_NOFLAG")
    A(f"  v_mov_b32 v7, {KB_FLAG}")
    A("  ds_write_b32 v7, v6")
    A("KB_NOFLAG:")
    A("  s_waitcnt lgkmcnt(0)")
    A("  s_barrier")
    STAMP(2)
    A(f"  v_mov_b32 v7, {KB_CNT}")
    A("  ds_read_b32 v28, v7 offset:48")
    A("  s_cmp_ge_u32 s28, 4")
    A("  s_cbranch_scc1 KB_MS")
    A("  ds_read_b128 v[16:19], v7")
    A("  ds_read_b128 v[20:23], v7 offset:16")
    A("  ds_read_b128 v[24:27], v7 offset:32")
    A("  s_waitcnt lgkmcnt(0)")
    A("  v_readfirstlane_b32 s51, v28")
    for i in range(10):
        A(f"  v_readfirstlane_b32 s{70+i}, v{16+i}")
    A("  s_cmp_lg_u32 s51, 0")
    A("  s_cbranch_scc1 KB_FALLBACK")
    for i in range(10):
        A(f"  s_add_u32 s{70+i}, s{70+i}, 31")
        A(f"  s_lshr_b32 s{70+i}, s{70+i}, 5")
        A(f"  s_max_u32 s{70+i}, s{70+i}, 1")
    A("  s_mov_b32 s62, 0")
    A("  s_mov_b32 s57, 0")
    for w in range(4):
        regs = [70 + ((w + 4 * idx) % 10) for idx in range(5)]
        A(f"  s_mov_b32 s60, s{regs[0]}")
        A(f"  s_mov_b32 s63, s{regs[0]}")
        for idx in range(1, 5):
            A(f"  s_lshl_b32 s61, s{regs[idx]}, {4*idx}")
            A("  s_or_b32 s60, s60, s61")
            A(f"  s_add_u32 s63, s63, s{regs[idx]}")
        A(f"  s_cmp_eq_u32 s28, {w}")
        A("  s_cselect_b32 s62, s60, s62")
        A("  s_cselect_b32 s57, s63, s57")
    A("  s_mov_b32 s52, 0")
    A("  s_mov_b32 s53, 0")
    A("  s_mov_b32 s54, 0")
    A("  s_mov_b32 s55, 0")
    A(f"  v_lshlrev_b32 v{V_RC}, 4, v2")
    A(f"  v_lshlrev_b32 v{V_G32}, 5, v3")
    DPRE = int(os.environ.get("DPRE", "2"))
    for st in range(DPRE):
        issue_a()
        A("  s_waitcnt lgkmcnt(0)")
        issue_b(st)
    A(f"  v_mul_u32_u24 v{V_PL}, {PS}, v2")
    A(f"  v_lshl_add_u32 v{V_PL}, v3, 4, v{V_PL}")
    A(f"  v_mul_u32_u24 v{V_A2L}, {A2S}, v3")
    A(f"  v_add_u32 v{V_A2L}, v{V_A2L}, v{V_RC}")
    A(f"  v_mov_b32 v{V_ONE}, 1")
    A("  s_mov_b32 s60, 0x3f803f80")
    for i in range(4):
        A(f"  v_mov_b32 v{ONES+i}, s60")
    for i in range(36):
        A(f"  v_mov_b32 v{ACC+i}, 0")
    STAMP(3)
    if DPRE < D:
        lds_spin("KB_SDW", KB_SDF, 4, 6, 7)
    for st in range(DPRE, D):
        issue_a()
        A("  s_waitcnt lgkmcnt(0)")
        issue_b(st)
    issue_a()
    lds_spin("KB_GSW", KB_GS, 4, 6, 7)
    STAMP(4)
    A("  s_mov_b32 s56, 0")
    A("KB_LOOP:")
    for st in range(D):
        item_decode(54, 60, 65)
        A(f"  s_mul_i32 s60, s60, {PG}")
        A("  s_lshl_b32 s61, s55, 6")
        A("  s_add_u32 s60, s60, s61")
        A(f"  s_add_u32 s60, s60, {KB_P}")
        A(f"  v_add_u32 v{V_TMP2}, s60, v{V_PL}")
        A(f"  ds_read_b128 {vr(PF,4)}, v{V_TMP2}")
        A(f"  s_waitcnt vmcnt({8*(D-1)})")
        A("  s_waitcnt lgkmcnt(0)")
        consume(st)
        issue_b(st)
        issue_a()
        A("  s_lshl_b32 s61, s54, 2")
        A("  s_lshr_b32 s61, s62, s61")
        A("  s_and_b32 s61, s61, 15")
        A("  s_add_u32 s55, s55, 1")
        A("  s_cmp_lt_u32 s55, s61")
        A(f"  s_cbranch_scc1 KB_NOFIN{st}")
        finalize()
        A("  s_mov_b32 s55, 0")
        A("  s_add_u32 s54, s54, 1")
        A(f"KB_NOFIN{st}:")
        A("  s_add_u32 s56, s56, 1")
        A("  s_cmp_ge_u32 s56, s57")
        A("  s_cbranch_scc1 KB_GDONE")
    A("  s_branch KB_LOOP")
    A("KB_GDONE:")
    STAMP(5); RSTAMP(15); STAMP_OUT(14, 28, 1 << 20)
    A("  s_endpgm")
    A("KB_MS:")
    A("  v_subrev_u32 v44, 256, v0")
    A("  v_lshlrev_b32 v5, 2, v44")
    A(f"  v_add_u32 v5, {KB_EL}, v5")
    for rd in range(5):
        A(f"  ds_read_b32 v{8+rd}, v5 offset:{1024*rd}")
    A("  s_waitcnt lgkmcnt(0)")
    A("  v_readfirstlane_b32 s51, v28")
    A("  s_cmp_lg_u32 s51, 0")
    A("  s_cbranch_scc1 KB_FALLBACK")
    OFFR = [13, 14, 15, 36, 37]
    DDR = 48
    for rd in range(5):
        A(f"  v_cmp_ne_u32 s[{36+2*rd}:{37+2*rd}], -1, v{8+rd}")
        A(f"  v_and_b32 v7, 0xffff, v{8+rd}")
        A(f"  v_lshlrev_b32 v{OFFR[rd]}, 4, v7")
    A("  s_mov_b32 s67, 0")
    A("KB_SRETRY:")
    for rd in range(5):
        A(f"  s_mov_b64 exec, s[{36+2*rd}:{37+2*rd}]")
        A(f"  global_load_dwordx4 {vr(16+4*rd,4)}, v{OFFR[rd]}, s[26:27] sc1")
    A("  s_mov_b64 exec, -1")
    for rd in range(5):
        A(f"  v_lshrrev_b32 v7, 16, v{8+rd}")
        A(f"  v_lshlrev_b32 v7, 5, v7")
        A(f"  v_add_u32 v7, {KB_SD+16}, v7")
        A(f"  s_mov_b64 exec, s[{36+2*rd}:{37+2*rd}]")
        A(f"  ds_read_b128 {vr(DDR+4*rd,4)}, v7")
        A("  s_mov_b64 exec, -1")
    A("  s_waitcnt vmcnt(0)")
    A("  s_mov_b64 s[46:47], 0")
    for rd in range(5):
        A(f"  s_mov_b64 exec, s[{36+2*rd}:{37+2*rd}]")
        for h in range(4):
            A(f"  v_cmp_eq_u32 vcc, -1, v{16+4*rd+h}")
            A("  s_or_b64 s[46:47], s[46:47], vcc")
    A("  s_mov_b64 exec, -1")
    A("  s_cmp_eq_u64 s[46:47], 0")
    A("  s_cbranch_scc1 KB_SOK")
    A("  s_add_u32 s67, s67, 1")
    A("  s_cmp_ge_u32 s67, 0x40000")
    A("  s_cbranch_scc1 KB_SOK")
    A("  s_sleep 2")
    A("  s_branch KB_SRETRY")
    A("KB_SOK:")
    if DIAG:
        A("  s_mov_b32 s90, s67")
    lds_signal(KB_SDF, 6, 7)
    STAMP(3)
    A("  s_mov_b32 s60, 0x3e4ccccd")
    for rd in range(5):
        S = 16 + 4 * rd
        Dd = DDR + 4 * rd
        A(f"  s_mov_b64 exec, s[{36+2*rd}:{37+2*rd}]")
        for h in range(4):
            A(f"  v_add_f32 v{S+h}, v{S+h}, v{Dd+h}")
        for h in range(4):
            A(f"  v_mul_f32 v{Dd+h}, s60, v{S+h}")
        for h in range(4):
            A(f"  v_max_f32 v{S+h}, v{S+h}, v{Dd+h}")
        for h in range(4):
            A(f"  v_exp_f32 v{S+h}, v{S+h}")
        A(f"  v_add_u32 v6, {256*rd}, v44")
        A("  v_lshrrev_b32 v7, 7, v6")
        A(f"  v_mul_u32_u24 v7, {PG}, v7")
        A("  v_and_b32 v6, 127, v6")
        A("  v_lshl_add_u32 v7, v6, 1, v7")
        A(f"  v_bfe_u32 v6, v{8+rd}, 16, 2")
        A(f"  v_mul_u32_u24 v6, {4*PS}, v6")
        A("  v_add_u32 v7, v7, v6")
        A(f"  v_add_u32 v7, {KB_P}, v7")
        A(f"  v_cvt_pk_bf16_f32 v{Dd}, v{S}, v{S+1}")
        A(f"  v_cvt_pk_bf16_f32 v{Dd+1}, v{S+2}, v{S+3}")
        A(f"  ds_write_b16 v7, v{Dd}")
        A(f"  ds_write_b16_d16_hi v7, v{Dd} offset:{PS}")
        A(f"  ds_write_b16 v7, v{Dd+1} offset:{2*PS}")
        A(f"  ds_write_b16_d16_hi v7, v{Dd+1} offset:{3*PS}")
    A("  s_mov_b64 exec, -1")
    lds_signal(KB_GS, 6, 7)
    A("  s_branch KB_MW")
    A("KB_FALLBACK:")
    gen_fallback()
    A(f"  v_mov_b32 v7, {KB_DONE}")
    A("  v_mov_b32 v8, 10")
    A("  v_mov_b32 v9, 10")
    A("  ds_write_b64 v7, v[8:9]")
    A("  s_waitcnt vmcnt(0) lgkmcnt(0)")
    A("  s_barrier")
    A("  s_cmp_lt_u32 s28, 4")
    A("  s_cbranch_scc1 KB_END")
    A("KB_MW:")
    gemm_setup()
    for i in range(RW):
        wload(i)
    STAMP(4)
    gen_gemm()
    STAMP(7); RSTAMP(15); STAMP_OUT(14, 28, 1 << 20)
    A("KB_END:")
    A("  s_endpgm")

def gen_fallback():
    A("  s_mov_b32 s62, 0")
    A("  v_lshlrev_b32 v48, 3, v1")
    A("  v_lshlrev_b32 v49, 2, v1")
    A("  s_mov_b32 s66, 0x3e4ccccd")
    A("  s_mov_b32 s67, 0xffff0000")
    A("KF_NODE:")
    A("  s_mul_i32 s63, s28, 5")
    A("  s_add_u32 s63, s63, s62")
    A("  s_add_u32 s64, s63, s29")
    for i in range(20):
        A(f"  v_mov_b32 v{16+i}, 0")
    A("  s_lshl_b32 s60, s63, 5")
    A(f"  s_add_u32 s60, s60, {KB_SD+16}")
    A("  v_mov_b32 v7, s60")
    A("  ds_read_b128 v[36:39], v7")
    A("  s_mov_b32 s65, 0")
    A("KF_CHUNK:")
    A("  v_add_u32 v50, s65, v49")
    A("  global_load_dword v40, v50, s[8:9]")
    A("  global_load_dword v41, v50, s[6:7]")
    A("  s_waitcnt vmcnt(0) lgkmcnt(0)")
    A("  v_cmp_eq_u32 s[68:69], s64, v40")
    A("  s_nop 1")
    A("KF_EDGE:")
    A("  s_cmp_eq_u64 s[68:69], 0")
    A("  s_cbranch_scc1 KF_NEXT")
    A("  s_ff1_i32_b64 s60, s[68:69]")
    A("  s_bitset0_b64 s[68:69], s60")
    A("  v_readlane_b32 s61, v41, s60")
    A("  s_nop 3")
    A("  s_lshl_b32 s60, s61, 9")
    A("  v_add_u32 v50, s60, v48")
    A("  buffer_load_dwordx2 v[42:43], v50, s[16:19], 0 offen")
    A("  s_lshl_b32 s60, s61, 4")
    A("  v_mov_b32 v51, s60")
    A("  s_mov_b32 s61, 0")
    A("KF_SRETRY:")
    A("  global_load_dwordx4 v[44:47], v51, s[26:27] sc1")
    A("  s_waitcnt vmcnt(0)")
    A("  s_mov_b64 s[42:43], 0")
    for h in range(4):
        A(f"  v_cmp_eq_u32 vcc, -1, v{44+h}")
        A("  s_or_b64 s[42:43], s[42:43], vcc")
    A("  s_cmp_eq_u64 s[42:43], 0")
    A("  s_cbranch_scc1 KF_SOK")
    A("  s_add_u32 s61, s61, 1")
    A("  s_cmp_ge_u32 s61, 0x40000")
    A("  s_cbranch_scc1 KF_SOK")
    A("  s_sleep 4")
    A("  s_branch KF_SRETRY")
    A("KF_SOK:")
    for h in range(4):
        A(f"  v_add_f32 v{44+h}, v{44+h}, v{36+h}")
        A(f"  v_mul_f32 v52, s66, v{44+h}")
        A(f"  v_max_f32 v{44+h}, v{44+h}, v52")
        A(f"  v_exp_f32 v{44+h}, v{44+h}")
    A("  s_nop 0")
    A("  v_cvt_pk_bf16_f32 v52, v44, v45")
    A("  v_cvt_pk_bf16_f32 v53, v46, v47")
    A("  v_lshlrev_b32 v44, 16, v52")
    A("  v_and_b32 v45, s67, v52")
    A("  v_lshlrev_b32 v46, 16, v53")
    A("  v_and_b32 v47, s67, v53")
    A("  v_lshlrev_b32 v52, 16, v42")
    A("  v_and_b32 v53, s67, v42")
    A("  v_lshlrev_b32 v54, 16, v43")
    A("  v_and_b32 v55, s67, v43")
    for h in range(4):
        A(f"  v_add_f32 v{32+h}, v{32+h}, v{44+h}")
        for f in range(4):
            A(f"  v_fma_f32 v{16+4*h+f}, v{44+h}, v{52+f}, v{16+4*h+f}")
    A("  s_branch KF_EDGE")
    A("KF_NEXT:")
    A("  s_add_u32 s65, s65, 256")
    A(f"  s_cmp_lt_u32 s65, {E*4}")
    A("  s_cbranch_scc1 KF_CHUNK")
    A("  s_mov_b32 s61, 0x3089705f")
    A(f"  s_mul_i32 s60, s63, {A2S}")
    A("  v_add_u32 v50, s60, v48")
    for h in range(4):
        A(f"  v_add_f32 v{32+h}, s61, v{32+h}")
        A(f"  v_rcp_f32 v{32+h}, v{32+h}")
        A("  s_nop 0")
        A(f"  v_mul_f32 v{32+h}, 0.25, v{32+h}")
        for f in range(4):
            A(f"  v_mul_f32 v{16+4*h+f}, v{16+4*h+f}, v{32+h}")
        A(f"  v_cvt_pk_bf16_f32 v52, v{16+4*h}, v{17+4*h}")
        A(f"  v_cvt_pk_bf16_f32 v53, v{18+4*h}, v{19+4*h}")
        A(f"  ds_write_b64 v50, v[52:53] offset:{h*512}")
    A("  s_add_u32 s62, s62, 1")
    A("  s_cmp_lt_u32 s62, 5")
    A("  s_cbranch_scc1 KF_NODE")

RW = 10
WR = 40
AF = 200
GACC = 224 - 0
def gacc(mt, nt):
    i = mt * 4 + nt
    if i < 8:
        return 224 + 4 * i
    return 24 + 4 * (i - 8)
VW0 = 4
VW1 = 5
VA0 = 6
VA1 = 7
VAB = 8
VAB = 11

def gemm_setup():
    A(f"  v_lshlrev_b32 v{VW0}, 4, v1")
    A(f"  v_add_u32 v{VW1}, 0x10000, v{VW0}")
    A(f"  v_mul_u32_u24 v{VAB}, {A2S}, v2")
    A(f"  v_lshl_add_u32 v{VAB}, v3, 4, v{VAB}")
    A("  s_and_b32 s66, s2, 15")

def kidx(i):
    half = i >> 4
    A(f"  s_add_u32 s61, s66, {i & 15}")
    A("  s_and_b32 s61, s61, 15")
    A("  s_lshr_b32 s67, s61, 2")
    A("  s_and_b32 s61, s61, 3")
    A("  s_lshl_b32 s67, s67, 3")
    A("  s_add_u32 s61, s61, s67")
    if half:
        A("  s_add_u32 s61, s61, 4")

def wload(i, a0=None, a1=None):
    a0 = VW0 if a0 is None else a0
    a1 = VW1 if a1 is None else a1
    slot = i % RW
    kidx(i)
    A("  s_lshl_b32 s68, s61, 11")
    b = WR + 16 * slot
    A(f"  buffer_load_dwordx4 {vr(b,4)}, v{a0}, s[20:23], s68 offen")
    A(f"  buffer_load_dwordx4 {vr(b+4,4)}, v{a0}, s[20:23], s68 offen offset:1024")
    A(f"  buffer_load_dwordx4 {vr(b+8,4)}, v{a1}, s[20:23], s68 offen")
    A(f"  buffer_load_dwordx4 {vr(b+12,4)}, v{a1}, s[20:23], s68 offen offset:1024")

def aload(i):
    b = AF + 12 * (i & 1)
    kidx(i)
    A("  s_lshl_b32 s69, s61, 6")
    A(f"  v_add_u32 v{VA0}, s69, v{VAB}")
    A(f"  v_add_u32 v{VA1}, {32*A2S}, v{VA0}")
    A(f"  ds_read_b128 {vr(b,4)}, v{VA0}")
    A(f"  ds_read_b128 {vr(b+4,4)}, v{VA0} offset:{16*A2S}")
    A(f"  ds_read_b128 {vr(b+8,4)}, v{VA1}")

def poll(half):
    A(f"  v_mov_b32 v{VA0}, {KB_DONE + 4*half}")
    A(f"KB_POLL{half}:")
    A(f"  ds_read_b32 v{VA1}, v{VA0}")
    A("  s_waitcnt lgkmcnt(0)")
    A(f"  v_readfirstlane_b32 s60, v{VA1}")
    A("  s_cmp_ge_u32 s60, 10")
    A(f"  s_cbranch_scc1 KB_POLLD{half}")
    A("  s_sleep 2")
    A(f"  s_branch KB_POLL{half}")
    A(f"KB_POLLD{half}:")

def gen_gemm():
    for i in range(32):
        if (i & 15) == 0:
            poll(i >> 4)
            if i == 16: STAMP(6)
            else: STAMP(5)
            aload(i)
        nxt = (i + 1) < 32 and ((i + 1) & 15) != 0
        if nxt:
            aload(i + 1)
        rem = min(RW - 1, 31 - i)
        A(f"  s_waitcnt vmcnt({4*rem})")
        A(f"  s_waitcnt lgkmcnt({3 if nxt else 0})")
        slot = i % RW
        b = AF + 12 * (i & 1)
        for mt in range(3):
            for nt in range(4):
                a = gacc(mt, nt)
                c = "0" if i == 0 else vr(a, 4)
                A(f"  v_mfma_f32_16x16x32_bf16 {vr(a,4)}, {vr(WR+16*slot+4*nt,4)}, {vr(b+4*mt,4)}, {c}")
        if i + RW < 32:
            wload(i + RW)
    A("  v_add_u32 v6, s29, v2")
    A("  v_lshlrev_b32 v6, 9, v6")
    A("  v_lshl_add_u32 v6, v3, 4, v6")
    A("  s_and_b32 s60, s28, 3")
    A("  s_lshl_b32 s60, s60, 7")
    A("  v_add_u32 v6, s60, v6")
    A("  v_add_u32 v7, 0x2000, v6")
    A("  v_add_u32 v8, 0x4000, v6")
    A("  v_cmp_gt_u32 vcc, 8, v2")
    A("  s_nop 4")
    for mt in range(3):
        if mt == 2:
            A("  s_and_saveexec_b64 s[34:35], vcc")
        for p in range(2):
            a0 = gacc(mt, 2 * p); a1 = gacc(mt, 2 * p + 1)
            o = 40 + 8 * mt + 4 * p
            A(f"  v_cvt_pk_bf16_f32 v{o}, v{a0}, v{a0+1}")
            A(f"  v_cvt_pk_bf16_f32 v{o+1}, v{a0+2}, v{a0+3}")
            A(f"  v_cvt_pk_bf16_f32 v{o+2}, v{a1}, v{a1+1}")
            A(f"  v_cvt_pk_bf16_f32 v{o+3}, v{a1+2}, v{a1+3}")
            A(f"  global_store_dwordx4 v{6+mt}, {vr(o,4)}, s[12:13] offset:{64*p}")
    A("  s_mov_b64 exec, -1")

def desc(name, vgpr, sgpr):
    acc = (vgpr + 3) // 4 * 4
    A(f".amdhsa_kernel {name}")
    A(f"  .amdhsa_next_free_vgpr {vgpr}")
    A(f"  .amdhsa_next_free_sgpr {sgpr}")
    A(f"  .amdhsa_accum_offset {acc}")
    A("  .amdhsa_group_segment_fixed_size 0")
    A("  .amdhsa_kernarg_size 72")
    A("  .amdhsa_user_sgpr_count 2")
    A("  .amdhsa_user_sgpr_kernarg_segment_ptr 1")
    A("  .amdhsa_system_sgpr_workgroup_id_x 1")
    A(".end_amdhsa_kernel")

def main():
    A(HEADER.format(lds_a=KA_LDS, lds_b=KB_LDS).rstrip("\n"))
    gen_prep()
    gen_main()
    A('.section .rodata,"a"')
    A(".p2align 6")
    desc("gat_prep_kernel", 96, 102)
    A(".p2align 6")
    desc("gat_main_kernel", 256, 102)
    txt = "\n".join(x for x in out if x is not None) + "\n"
    path = sys.argv[1] if len(sys.argv) > 1 else "standalone__graph_attention_gat__graph.s"
    open(path, "w").write(txt)

main()
```

```python
import sys, os

N = 10000
E = 160000
CELL_BYTES = 16000
STAB_OFF = 4194304
WF_OFF = 5242880
BF_OFF = 6291456
XBYTES = N * 512

DIAG = os.environ.get("DIAG") == "1"
STAMP_OFF = 8 << 20
out = []
def A(s=""):
    out.append(s)
def STAMP(i):
    if not DIAG: return
    A("  s_memtime s[98:99]")
    A("  s_waitcnt lgkmcnt(0)")
    A(f"  s_mov_b32 s{82+i}, s98")
def RSTAMP(i):
    if not DIAG: return
    A("  s_memrealtime s[98:99]")
    A("  s_waitcnt lgkmcnt(0)")
    A(f"  s_mov_b32 s{82+i}, s98")
def STAMP_OUT(wsreg, wavereg, koff, v0=4, v1=5):
    if not DIAG: return
    A("  s_mov_b64 exec, 1")
    A("  s_lshl_b32 s98, s2, 4")
    A(f"  s_add_u32 s98, s98, s{wavereg}")
    A("  s_lshl_b32 s98, s98, 6")
    A(f"  s_add_u32 s98, s98, {STAMP_OFF + koff}")
    A(f"  v_mov_b32 v{v0}, s98")
    for i in range(16):
        A(f"  v_mov_b32 v{v1}, s{82+i}")
        A(f"  global_store_dword v{v0}, v{v1}, s[{wsreg}:{wsreg+1}] offset:{4*i}")
        A("  s_nop 1")

def vr(b, n):
    return f"v[{b}:{b+n-1}]"

HEADER = """; GAT: out[n] = mean_h sum_e alpha[e,h] * (x[src e] @ W_h)  computed as  (sum_e alpha x[src e]) @ W
; @launch kernel=gat_prep_kernel grid=(256,1,1) block=(640,1,1) lds={lds_a}
; @launch kernel=gat_main_kernel grid=(250,1,1) block=(512,1,1) lds={lds_b}
.amdgcn_target "amdgcn-amd-amdhsa--gfx950"
.text
"""

KA_CELLS = 0
KA_CNT = 16000
KA_LDS = 17024

K0SC = os.environ.get("K0SC", "")
def gen_prep():
    A(".globl gat_prep_kernel")
    A(".p2align 8")
    A(".type gat_prep_kernel,@function")
    A("gat_prep_kernel:")
    A("  s_cmp_ge_u32 s2, 256")
    A("  s_cbranch_scc1 KA_END")
    RSTAMP(14); STAMP(0)
    A("  s_load_dwordx8 s[4:11], s[0:1], 0")
    A("  s_load_dwordx4 s[12:15], s[0:1], 32")
    A("  s_load_dwordx2 s[16:17], s[0:1], 64")
    A("  v_lshrrev_b32 v6, 6, v0")
    A("  v_and_b32 v1, 63, v0")
    A("  v_and_b32 v2, 15, v1")
    A("  v_lshrrev_b32 v3, 4, v1")
    A("  v_readfirstlane_b32 s24, v6")
    A("  s_lshr_b32 s25, s2, 4")
    A("  s_and_b32 s26, s2, 15")
    A("  v_mov_b32 v4, 0")
    A("  v_mov_b32 v5, 0")
    A("  s_waitcnt lgkmcnt(0)")
    A("  s_cmp_ge_u32 s2, 250")
    A("  s_cbranch_scc1 KA_NOEDGE")
    A("  s_mul_i32 s27, s2, 2560")
    A("  v_lshl_add_u32 v6, v0, 2, s27")
    A("  global_load_dword v4, v6, s[8:9]")
    A("  global_load_dword v5, v6, s[6:7]")
    A("  s_mul_i32 s27, s2, 640")
    A(f"  s_add_u32 s27, s27, {STAB_OFF}")
    A("  v_lshl_add_u32 v6, v0, 4, s27")
    for i in range(4):
        A(f"  v_mov_b32 v{80+i}, -1")
    A("  v_cmp_gt_u32 vcc, 40, v0")
    A("  s_and_saveexec_b64 s[32:33], vcc")
    A("  s_cbranch_execz KA_NORST")
    A("  global_store_dwordx4 v6, v[80:83], s[16:17]")
    A("KA_NORST:")
    A("  s_mov_b64 exec, s[32:33]")
    A("KA_NOEDGE:")
    A("  s_mov_b32 s36, 0")
    A("  s_cmp_ge_u32 s24, 8")
    A("  s_cbranch_scc1 KA_SHUF_LOAD")
    A("  s_cmp_lg_u32 s24, 0")
    A("  s_cbranch_scc1 KA_INIT")
    A("  s_cmp_ge_u32 s2, 64")
    A("  s_cbranch_scc1 KA_INIT")
    A("  s_mov_b32 s36, 1")
    A("  v_mov_b32 v72, s12")
    A("  v_mov_b32 v73, s13")
    A("  v_mov_b32 v74, s14")
    A("  v_mov_b32 v75, s15")
    A("  v_cmp_eq_u32 vcc, 1, v2")
    A("  s_lshl_b32 s27, s25, 9")
    A("  v_lshlrev_b32 v76, 4, v3")
    A("  v_add_u32 v76, s27, v76")
    A("  v_cndmask_b32 v72, v72, v74, vcc")
    A("  v_cndmask_b32 v73, v73, v75, vcc")
    A("  v_add_co_u32 v72, vcc, v72, v76")
    A("  s_nop 1")
    A("  v_addc_co_u32 v73, vcc, 0, v73, vcc")
    for i in range(32):
        A(f"  v_mov_b32 v{40+i}, 0")
    A("  v_cmp_gt_u32 vcc, 2, v2")
    A("  s_and_saveexec_b64 s[32:33], vcc")
    for kk in range(8):
        A(f"  global_load_dwordx4 {vr(40+4*kk,4)}, v[72:73], off offset:{kk*64}")
    A("  s_mov_b64 exec, s[32:33]")
    A("  s_lshl_b32 s27, s2, 13")
    A("  v_lshlrev_b32 v76, 9, v2")
    A("  v_lshl_add_u32 v76, v3, 4, v76")
    A("  v_add_u32 v76, s27, v76")
    for kk in range(8):
        A(f"  global_load_dwordx4 {vr(8+4*kk,4)}, v76, s[10:11] offset:{kk*64}")
    A("  s_branch KA_INIT")
    A("KA_SHUF_LOAD:")
    A("  s_mov_b32 s36, 2")
    A("  s_lshr_b32 s27, s2, 5")
    A("  s_lshl_b32 s27, s27, 6")
    A("  s_and_b32 s34, s2, 31")
    A("  s_lshl_b32 s34, s34, 14")
    A("  s_add_u32 s27, s27, s34")
    A("  s_sub_u32 s34, s24, 8")
    A("  s_lshl_b32 s34, s34, 3")
    A("  s_add_u32 s27, s27, s34")
    A("  v_lshrrev_b32 v76, 2, v2")
    A("  v_lshlrev_b32 v76, 4, v76")
    A("  v_and_b32 v77, 3, v2")
    A("  v_lshl_add_u32 v76, v77, 1, v76")
    A("  v_lshl_add_u32 v76, v3, 12, v76")
    A("  v_add_u32 v76, s27, v76")
    for j in range(8):
        A(f"  global_load_ushort v{44+j}, v76, s[10:11] offset:{j*512}")
    A("KA_INIT:")
    for i in range(4):
        A(f"  v_mov_b32 v{80+i}, -1")
        A(f"  v_mov_b32 v{84+i}, 0")
    A("  v_lshlrev_b32 v79, 4, v0")
    A(f"  ds_write_b128 v79, v[80:83] offset:{KA_CELLS}")
    A("  v_cmp_gt_u32 vcc, 360, v0")
    A("  s_and_saveexec_b64 s[32:33], vcc")
    A(f"  ds_write_b128 v79, v[80:83] offset:{KA_CELLS+10240}")
    A("  s_mov_b64 exec, s[32:33]")
    A("  v_cmp_gt_u32 vcc, 64, v0")
    A("  s_and_saveexec_b64 s[32:33], vcc")
    A(f"  ds_write_b128 v79, v[84:87] offset:{KA_CNT}")
    A("  s_mov_b64 exec, s[32:33]")
    A("  s_waitcnt lgkmcnt(0)")
    A("  s_barrier")
    STAMP(1)
    A("  s_cmp_ge_u32 s2, 250")
    A("  s_cbranch_scc1 KA_NOPART")
    A("  s_cmp_eq_u32 s36, 1")
    A("  s_cbranch_scc1 KA_PW1")
    A("  s_cmp_eq_u32 s36, 2")
    A("  s_cbranch_scc1 KA_PW2")
    A("  s_waitcnt vmcnt(0)")
    A("  s_branch KA_PW3")
    A("KA_PW1:")
    A("  s_waitcnt vmcnt(16)")
    A("  s_branch KA_PW3")
    A("KA_PW2:")
    A("  s_waitcnt vmcnt(8)")
    A("KA_PW3:")
    A("  v_mul_u32_u24 v6, 52429, v4")
    A("  v_lshrrev_b32 v6, 21, v6")
    A("  v_mul_u32_u24 v7, 40, v6")
    A("  v_sub_u32 v7, v4, v7")
    A("  v_lshl_or_b32 v7, v7, 16, v5")
    A("  v_lshlrev_b32 v88, 2, v6")
    A("  v_mov_b32 v89, 1")
    A(f"  ds_add_rtn_u32 v90, v88, v89 offset:{KA_CNT}")
    A("  v_mov_b32 v91, 0xfffffffe")
    A("  v_lshlrev_b32 v88, 6, v6")
    A("  s_waitcnt lgkmcnt(0)")
    A("  v_cmp_gt_u32 vcc, 15, v90")
    A("  v_min_u32 v90, 15, v90")
    A("  v_lshl_add_u32 v88, v90, 2, v88")
    A("  v_cndmask_b32 v7, v91, v7, vcc")
    A(f"  ds_write_b32 v88, v7 offset:{KA_CELLS}")
    A("KA_NOPART:")
    A("  s_waitcnt lgkmcnt(0)")
    A("  s_barrier")
    STAMP(2)
    A("  s_cmp_ge_u32 s2, 250")
    A("  s_cbranch_scc1 KA_NOCOPY")
    A(f"  ds_read_b128 v[80:83], v79 offset:{KA_CELLS}")
    A(f"  ds_read_b128 v[84:87], v79 offset:{KA_CELLS+10240}")
    A("  v_lshrrev_b32 v88, 2, v0")
    A(f"  v_mul_u32_u24 v88, {CELL_BYTES}, v88")
    A("  v_and_b32 v89, 3, v0")
    A("  v_lshl_add_u32 v88, v89, 4, v88")
    A("  s_lshl_b32 s27, s2, 6")
    A("  v_add_u32 v88, s27, v88")
    A(f"  v_add_u32 v89, {160*CELL_BYTES}, v88")
    A("  s_waitcnt lgkmcnt(0)")
    A("  global_store_dwordx4 v88, v[80:83], s[16:17]"+K0SC)
    A("  v_cmp_gt_u32 vcc, 360, v0")
    A("  s_and_saveexec_b64 s[32:33], vcc")
    A("  s_cbranch_execz KA_CP2")
    A("  global_store_dwordx4 v89, v[84:87], s[16:17]"+K0SC)
    A("KA_CP2:")
    A("  s_mov_b64 exec, s[32:33]")
    A("KA_NOCOPY:")
    STAMP(3)
    A("  s_cmp_eq_u32 s36, 0")
    A("  s_cbranch_scc1 KA_FIN")
    A("  s_cmp_eq_u32 s36, 2")
    A("  s_cbranch_scc1 KA_SHUF_ST")
    A("  s_waitcnt vmcnt(0)")
    for kk in range(8):
        c = "0" if kk == 0 else "v[92:95]"
        A(f"  v_mfma_f32_16x16x32_bf16 v[92:95], {vr(8+4*kk,4)}, {vr(40+4*kk,4)}, {c}")
    A("  s_lshr_b32 s27, s26, 1")
    A("  s_lshl_b32 s27, s27, 10")
    A("  s_and_b32 s34, s26, 1")
    A("  s_lshl_b32 s34, s34, 9")
    A("  s_add_u32 s27, s27, s34")
    A("  s_lshl_b32 s34, s25, 6")
    A("  s_add_u32 s27, s27, s34")
    A(f"  s_add_u32 s27, s27, {BF_OFF}")
    A("  v_lshrrev_b32 v88, 1, v3")
    A("  v_lshlrev_b32 v88, 8, v88")
    A("  v_lshl_add_u32 v88, v2, 5, v88")
    A("  v_and_b32 v89, 1, v3")
    A("  v_lshl_add_u32 v88, v89, 3, v88")
    A("  v_add_u32 v88, s27, v88")
    A("  s_mov_b32 s34, 0x3fb8aa3b")
    A("  s_mov_b32 s35, 0xffff0000")
    A("  v_cmp_gt_u32 vcc, 2, v2")
    A("  s_nop 1")
    b = 92
    for r in range(4):
        A(f"  v_mul_f32 v{b+r}, s34, v{b+r}")
    A(f"  v_cvt_pk_bf16_f32 v80, v{b}, v{b+1}")
    A(f"  v_cvt_pk_bf16_f32 v81, v{b+2}, v{b+3}")
    A("  v_lshlrev_b32 v82, 16, v80")
    A("  v_and_b32 v83, s35, v80")
    A("  v_lshlrev_b32 v84, 16, v81")
    A("  v_and_b32 v85, s35, v81")
    for r in range(4):
        A(f"  v_sub_f32 v{82+r}, v{b+r}, v{82+r}")
    A("  v_cvt_pk_bf16_f32 v82, v82, v83")
    A("  v_cvt_pk_bf16_f32 v83, v84, v85")
    A("  s_and_saveexec_b64 s[32:33], vcc")
    A("  global_store_dwordx2 v88, v[80:81], s[16:17]")
    A("  global_store_dwordx2 v88, v[82:83], s[16:17] offset:16")
    A("  s_mov_b64 exec, s[32:33]")
    A("  s_branch KA_FIN")
    A("KA_SHUF_ST:")
    A("  s_waitcnt vmcnt(0)")
    for t in range(4):
        A(f"  v_lshl_or_b32 v{40+t}, v{45+2*t}, 16, v{44+2*t}")
    A("  s_lshl_b32 s27, s2, 11")
    A(f"  s_add_u32 s27, s27, {WF_OFF - 512*16}")
    A("  v_lshl_add_u32 v88, v0, 4, s27")
    A("  global_store_dwordx4 v88, v[40:43], s[16:17]"+K0SC)
    A("KA_FIN:")
    A("  s_cmp_ge_u32 s2, 250")
    A("  s_cbranch_scc1 KA_NOWARM")
    A("  s_mul_i32 s27, s2, 20480")
    A("  s_lshl_b32 s34, s24, 11")
    A("  s_add_u32 s27, s27, s34")
    A("  v_lshl_add_u32 v88, v1, 4, s27")
    A("  global_load_dwordx4 v[8:11], v88, s[4:5]")
    A("  global_load_dwordx4 v[12:15], v88, s[4:5] offset:1024")
    A("KA_NOWARM:")
    STAMP(4); RSTAMP(15); STAMP_OUT(16, 24, 0)
    A("KA_END:")
    A("  s_endpgm")

A2S = 2064
KB_A2 = 0
KB_P = 40 * A2S
PS = 272
PG = 16 * PS
KB_EL = KB_P + 10 * PG
KB_DUMMY = KB_EL + 5120
KB_SD = KB_DUMMY + 128
KB_CNT = KB_SD + 1536
KB_FLAG = KB_CNT + 48
KB_DONE = KB_CNT + 52
KB_LDS = KB_CNT + 64

D = 4
RB = 40
ACC = 168
DEN = 200
T0 = 204
PF = 220
ENT = 224
AD = 232
ONES = 240
V_RC = 244
V_G32 = 245
V_PL = 246
V_A2L = 247
V_TMP = 248
V_TMP2 = 249
V_ONE = 250

def item_decode(idx_reg, grp_out, hf_out):
    A(f"  s_lshl_b32 s{grp_out}, s{idx_reg}, 2")
    A(f"  s_add_u32 s{grp_out}, s{grp_out}, s28")
    A(f"  s_cmp_ge_u32 s{grp_out}, 10")
    A(f"  s_cselect_b32 s{hf_out}, 1, 0")
    A(f"  s_cselect_b32 s61, 10, 0")
    A(f"  s_sub_u32 s{grp_out}, s{grp_out}, s61")

def issue_a():
    item_decode(52, 60, 63)
    A("  s_lshl_b32 s64, s63, 8")
    A("  s_lshl_b32 s60, s60, 9")
    A("  s_lshl_b32 s61, s53, 7")
    A("  s_add_u32 s60, s60, s61")
    A(f"  s_add_u32 s60, s60, {KB_EL}")
    A("  s_cmp_ge_u32 s52, 5")
    A(f"  s_cselect_b32 s60, {KB_DUMMY}, s60")
    A(f"  v_add_u32 v{V_TMP}, s60, v{V_G32}")
    A(f"  ds_read_b128 {vr(ENT,4)}, v{V_TMP}")
    A(f"  ds_read_b128 {vr(ENT+4,4)}, v{V_TMP} offset:16")
    A("  s_lshl_b32 s61, s52, 2")
    A("  s_lshr_b32 s61, s62, s61")
    A("  s_and_b32 s61, s61, 15")
    A("  s_add_u32 s53, s53, 1")
    A("  s_cmp_ge_u32 s53, s61")
    A("  s_cselect_b32 s53, 0, s53")
    A("  s_addc_u32 s52, s52, 0")
    A("  s_min_u32 s52, s52, 6")

def issue_b(st):
    for i in range(8):
        A(f"  v_mad_u32_u16 v{AD+i}, v{ENT+i}, s32, v{V_RC}")
    for i in range(8):
        A(f"  buffer_load_dwordx4 {vr(RB+32*st+4*i,4)}, v{AD+i}, s[16:19], s64 offen")

def perms(st, q, tb):
    R = lambda i: RB + 32 * st + 4 * i + q
    for t in range(4):
        A(f"  v_perm_b32 v{tb+t}, v{R(2*t+1)}, v{R(2*t)}, s30")
    for t in range(4):
        A(f"  v_perm_b32 v{tb+4+t}, v{R(2*t+1)}, v{R(2*t)}, s31")

def mf(q, tb):
    for u in range(2):
        a = ACC + 4 * (2 * q + u)
        A(f"  v_mfma_f32_16x16x32_bf16 {vr(a,4)}, {vr(PF,4)}, {vr(tb+4*u,4)}, {vr(a,4)}")

def consume(st):
    TA, TB = T0, T0 + 8
    perms(st, 0, TA)
    perms(st, 1, TB)
    mf(0, TA)
    perms(st, 2, TA)
    mf(1, TB)
    perms(st, 3, TB)
    mf(2, TA)
    A(f"  v_mfma_f32_16x16x32_bf16 {vr(DEN,4)}, {vr(PF,4)}, {vr(ONES,4)}, {vr(DEN,4)}")
    mf(3, TB)

def finalize():
    A("  s_nop 7")
    item_decode(54, 60, 65)
    A(f"  s_mul_i32 s60, s60, {4*A2S}")
    A("  s_lshl_b32 s61, s65, 8")
    A("  s_add_u32 s60, s60, s61")
    A(f"  v_add_u32 v{V_TMP2}, s60, v{V_A2L}")
    A("  s_mov_b32 s61, 0x3089705f")
    for r in range(4):
        A(f"  v_add_f32 v{DEN+r}, s61, v{DEN+r}")
    for r in range(4):
        A(f"  v_rcp_f32 v{DEN+r}, v{DEN+r}")
    A("  s_nop 0")
    for r in range(4):
        A(f"  v_mul_f32 v{DEN+r}, 0.25, v{DEN+r}")
    for r in range(4):
        for j in range(8):
            A(f"  v_mul_f32 v{ACC+4*j+r}, v{ACC+4*j+r}, v{DEN+r}")
        tb = T0 + 4 * (r & 3)
        for t in range(4):
            A(f"  v_cvt_pk_bf16_f32 v{tb+t}, v{ACC+4*(2*t)+r}, v{ACC+4*(2*t+1)+r}")
        A(f"  ds_write_b128 v{V_TMP2}, {vr(tb,4)} offset:{r*512}")
    A("  s_lshl_b32 s61, s65, 2")
    A(f"  s_add_u32 s61, s61, {KB_DONE}")
    A(f"  v_mov_b32 v{V_TMP2}, s61")
    for i in range(36):
        A(f"  v_mov_b32 v{ACC+i}, 0")
    A("  s_waitcnt lgkmcnt(0)")
    A("  s_mov_b64 exec, 1")
    A(f"  ds_add_u32 v{V_TMP2}, v{V_ONE}")
    A("  s_mov_b64 exec, -1")

def bfreg(kk):
    return 232 + 4 * kk if kk < 6 else 32 + 4 * (kk - 6)

def lds_spin(name, addr, target, vtmp, vtmp2):
    A(f"  v_mov_b32 v{vtmp}, {addr}")
    A(f"{name}:")
    A(f"  ds_read_b32 v{vtmp2}, v{vtmp}")
    A("  s_waitcnt lgkmcnt(0)")
    A(f"  v_readfirstlane_b32 s60, v{vtmp2}")
    A(f"  s_cmp_ge_u32 s60, {target}")
    A(f"  s_cbranch_scc1 {name}_D")
    A("  s_sleep 1")
    A(f"  s_branch {name}")
    A(f"{name}_D:")

def lds_signal(addr, vtmp, vone):
    A(f"  v_mov_b32 v{vtmp}, {addr}")
    A(f"  v_mov_b32 v{vone}, 1")
    A("  s_waitcnt lgkmcnt(0)")
    A("  s_mov_b64 exec, 1")
    A(f"  ds_add_u32 v{vtmp}, v{vone}")
    A("  s_mov_b64 exec, -1")

WEARLY = int(os.environ.get("WEARLY", "4"))
KB_SDF = KB_CNT + 40
KB_GS = KB_CNT + 44
WPRE = int(os.environ.get("WPRE", "0"))

def spf_code():
    for rd in range(5):
        A(f"SPF_L{rd}:")
        A(f"  s_cmp_eq_u64 s[{36+2*rd}:{37+2*rd}], 0")
        A(f"  s_cbranch_scc1 SPF_D{rd}")
        A(f"  s_ff1_i32_b64 s60, s[{36+2*rd}:{37+2*rd}]")
        A(f"  s_bitset0_b64 s[{36+2*rd}:{37+2*rd}], s60")
        A(f"  v_readlane_b32 s61, v{8+rd}, s60")
        A("  s_and_b32 s61, s61, 0xffff")
        A("  s_lshl_b32 s61, s61, 9")
        A("  s_add_u32 s60, s61, 256")
        A("  s_add_u32 s61, s61, 384")
        A("  s_load_dword s46, s[4:5], s60")
        A("  s_load_dword s47, s[4:5], s61")
        A(f"  s_branch SPF_L{rd}")
        A(f"SPF_D{rd}:")
    A("  s_waitcnt lgkmcnt(0)")

def gen_main():
    A(".globl gat_main_kernel")
    A(".p2align 8")
    A(".type gat_main_kernel,@function")
    A("gat_main_kernel:")
    A("  s_cmp_ge_u32 s2, 250")
    A("  s_cbranch_scc1 KB_END")
    RSTAMP(14); STAMP(0)
    A("  s_load_dwordx4 s[4:7], s[0:1], 0")
    A("  s_load_dwordx2 s[8:9], s[0:1], 16")
    A("  s_load_dwordx2 s[12:13], s[0:1], 48")
    A("  s_load_dwordx2 s[14:15], s[0:1], 64")
    A("  v_lshrrev_b32 v6, 6, v0")
    A("  v_and_b32 v1, 63, v0")
    A("  v_and_b32 v2, 15, v1")
    A("  v_lshrrev_b32 v3, 4, v1")
    A("  v_readfirstlane_b32 s28, v6")
    A("  s_mul_i32 s29, s2, 40")
    A("  s_mov_b32 s30, 0x05040100")
    A("  s_mov_b32 s31, 0x07060302")
    A("  s_movk_i32 s32, 0x200")
    A("  s_mov_b32 s33, 0xfffffffe")
    A("  s_and_b32 s66, s2, 15")
    A("  v_lshlrev_b32 v4, 4, v0")
    for i in range(4):
        A(f"  v_mov_b32 v{12+i}, -1")
    A("  s_sub_u32 s50, s28, 4")
    A("  s_waitcnt lgkmcnt(0)")
    A("  s_mov_b32 s16, s4")
    A("  s_and_b32 s17, s5, 0xffff")
    A(f"  s_mov_b32 s18, {XBYTES}")
    A("  s_mov_b32 s19, 0x20000")
    A("  s_cmp_ge_u32 s50, 3")
    A("  s_cbranch_scc1 KB_CELLS")
    A("  s_lshl_b32 s60, s50, 4")
    A("  s_add_u32 s60, s60, s29")
    A("  v_add_u32 v6, s60, v2")
    A("  v_lshlrev_b32 v6, 9, v6")
    A("  v_lshl_add_u32 v6, v3, 4, v6")
    A(f"  s_add_u32 s60, s14, {BF_OFF}")
    A("  s_addc_u32 s61, s15, 0")
    A("  v_lshlrev_b32 v7, 4, v1")
    A("  v_add_u32 v5, 0x1000, v7")
    for kk in range(8):
        A(f"  buffer_load_dwordx4 {vr(64+4*kk,4)}, v6, s[16:19], 0 offen offset:{kk*64}")
        A(f"  global_load_dwordx4 {vr(96+4*kk,4)}, v{7 if kk<4 else 5}, s[60:61] offset:{(kk&3)*1024}")
    A("KB_CELLS:")
    A(f"  s_mul_i32 s60, s2, {CELL_BYTES}")
    A("  s_add_u32 s24, s14, s60")
    A("  s_addc_u32 s25, s15, 0")
    A("  v_add_u32 v5, 0x2000, v4")
    A("  global_load_dwordx4 v[8:11], v4, s[24:25]")
    A("  v_cmp_gt_u32 vcc, 488, v0")
    A("  s_and_saveexec_b64 s[34:35], vcc")
    A("  global_load_dwordx4 v[12:15], v5, s[24:25]")
    A("  s_mov_b64 exec, s[34:35]")
    A(f"  s_add_u32 s26, s14, {STAB_OFF}")
    A("  s_addc_u32 s27, s15, 0")
    A("  s_and_b32 s60, s28, 3")
    A("  s_lshl_b32 s60, s60, 17")
    A(f"  s_add_u32 s60, s60, {WF_OFF}")
    A("  s_add_u32 s20, s14, s60")
    A("  s_addc_u32 s21, s15, 0")
    A("  s_and_b32 s21, s21, 0xffff")
    A("  s_mov_b32 s22, 131072")
    A("  s_mov_b32 s23, 0x20000")
    for i in range(4):
        A(f"  v_mov_b32 v{20+i}, 0")
        A(f"  v_mov_b32 v{24+i}, -1")
    A(f"  v_add_u32 v5, {KB_P}, v4")
    for k in range(5):
        A(f"  ds_write_b128 v5, v[20:23] offset:{k*8192}")
    A("  v_cmp_gt_u32 vcc, 160, v0")
    A("  s_and_saveexec_b64 s[34:35], vcc")
    A(f"  ds_write_b128 v5, v[20:23] offset:{5*8192}")
    A("  s_mov_b64 exec, s[34:35]")
    A(f"  v_add_u32 v5, {KB_EL}, v4")
    A("  v_cmp_gt_u32 vcc, 328, v0")
    A("  s_and_saveexec_b64 s[34:35], vcc")
    A("  ds_write_b128 v5, v[24:27]")
    A("  s_mov_b64 exec, s[34:35]")
    A(f"  v_add_u32 v5, {KB_CNT}, v4")
    A("  v_cmp_gt_u32 vcc, 4, v0")
    A("  s_and_saveexec_b64 s[34:35], vcc")
    A("  ds_write_b128 v5, v[20:23]")
    A("  s_mov_b64 exec, s[34:35]")
    A("  s_cmp_ge_u32 s50, 3")
    A("  s_cbranch_scc1 KB_NOS")
    for kk in range(8):
        A(f"  s_waitcnt vmcnt({16-2*kk})")
        c = "0" if kk == 0 else "v[28:31]"
        A(f"  v_mfma_f32_16x16x32_bf16 v[28:31], {vr(64+4*kk,4)}, {vr(96+4*kk,4)}, {c}")
    A("  s_lshl_b32 s60, s50, 9")
    A(f"  s_add_u32 s60, s60, {KB_SD}")
    A("  v_lshlrev_b32 v6, 7, v3")
    A("  v_bfe_u32 v7, v2, 1, 1")
    A("  v_lshl_add_u32 v6, v7, 4, v6")
    A("  v_lshrrev_b32 v7, 2, v2")
    A("  v_lshl_add_u32 v6, v7, 2, v6")
    A("  v_add_u32 v6, s60, v6")
    A("  v_lshl_add_u32 v16, v1, 5, s60")
    A("  s_lshl_b32 s61, s50, 4")
    A("  v_add_u32 v17, s61, v1")
    A("  v_add_u32 v18, s29, v17")
    A("  v_lshlrev_b32 v18, 4, v18")
    A("  v_and_b32 v7, 1, v2")
    A("  v_cmp_eq_u32 vcc, 0, v7")
    A("  v_cmp_gt_u32 s[42:43], 40, v17")
    for r in range(4):
        A(f"  v_add_f32_dpp v{32+r}, v{28+r}, v{28+r} quad_perm:[1,0,3,2] row_mask:0xf bank_mask:0xf")
    A("  s_and_saveexec_b64 s[34:35], vcc")
    for r in range(4):
        A(f"  ds_write_b32 v6, v{32+r} offset:{r*32}")
    A("  s_and_b64 exec, s[42:43], 0xffff")
    A("  s_waitcnt lgkmcnt(0)")
    A("  ds_read_b128 v[32:35], v16")
    A("  s_waitcnt lgkmcnt(0)")
    A("  global_store_dwordx4 v18, v[32:35], s[26:27] sc1")
    A("  s_mov_b64 exec, -1")
    A("  s_waitcnt vmcnt(1)")
    A("  s_branch KB_B0")
    A("KB_NOS:")
    A("  s_waitcnt vmcnt(0)")
    A("KB_B0:")
    A("  s_waitcnt lgkmcnt(0)")
    A("  s_barrier")
    STAMP(1)
    A("  s_mov_b64 s[34:35], 0")
    A("  v_mov_b32 v6, 1")
    for e in range(8):
        A(f"  v_cmp_gt_u32 s[{36+2*e}:{37+2*e}], s33, v{8+e}")
        A(f"  v_cmp_eq_u32 vcc, s33, v{8+e}")
        A(f"  v_lshrrev_b32 v{16+e}, 18, v{8+e}")
        A("  s_or_b64 s[34:35], s[34:35], vcc")
        A(f"  v_lshlrev_b32 v7, 2, v{16+e}")
        A(f"  v_add_u32 v7, {KB_CNT}, v7")
        A(f"  s_mov_b64 exec, s[{36+2*e}:{37+2*e}]")
        A(f"  ds_add_rtn_u32 v{24+e}, v7, v6")
        A("  s_mov_b64 exec, -1")
    A("  s_waitcnt lgkmcnt(0)")
    for e in range(8):
        A(f"  s_mov_b64 exec, s[{36+2*e}:{37+2*e}]")
        A(f"  v_cmp_lt_u32 vcc, 127, v{24+e}")
        A(f"  v_min_u32 v{24+e}, 127, v{24+e}")
        A(f"  v_lshlrev_b32 v7, 9, v{16+e}")
        A("  s_or_b64 s[34:35], s[34:35], vcc")
        A(f"  v_lshl_add_u32 v7, v{24+e}, 2, v7")
        A(f"  v_add_u32 v7, {KB_EL}, v7")
        A(f"  ds_write_b32 v7, v{8+e}")
    A("  s_mov_b64 exec, -1")
    A("  s_cmp_eq_u64 s[34:35], 0")
    A("  s_cbranch_scc1 KB_NOFLAG")
    A(f"  v_mov_b32 v7, {KB_FLAG}")
    A("  ds_write_b32 v7, v6")
    A("KB_NOFLAG:")
    A("  s_waitcnt lgkmcnt(0)")
    A("  s_barrier")
    STAMP(2)
    A(f"  v_mov_b32 v7, {KB_CNT}")
    A("  ds_read_b32 v28, v7 offset:48")
    A("  s_cmp_ge_u32 s28, 4")
    A("  s_cbranch_scc1 KB_MS")
    A("  ds_read_b128 v[16:19], v7")
    A("  ds_read_b128 v[20:23], v7 offset:16")
    A("  ds_read_b128 v[24:27], v7 offset:32")
    A("  s_waitcnt lgkmcnt(0)")
    A("  v_readfirstlane_b32 s51, v28")
    for i in range(10):
        A(f"  v_readfirstlane_b32 s{70+i}, v{16+i}")
    A("  s_cmp_lg_u32 s51, 0")
    A("  s_cbranch_scc1 KB_FALLBACK")
    for i in range(10):
        A(f"  s_add_u32 s{70+i}, s{70+i}, 31")
        A(f"  s_lshr_b32 s{70+i}, s{70+i}, 5")
        A(f"  s_max_u32 s{70+i}, s{70+i}, 1")
    A("  s_mov_b32 s62, 0")
    A("  s_mov_b32 s57, 0")
    for w in range(4):
        regs = [70 + ((w + 4 * idx) % 10) for idx in range(5)]
        A(f"  s_mov_b32 s60, s{regs[0]}")
        A(f"  s_mov_b32 s63, s{regs[0]}")
        for idx in range(1, 5):
            A(f"  s_lshl_b32 s61, s{regs[idx]}, {4*idx}")
            A("  s_or_b32 s60, s60, s61")
            A(f"  s_add_u32 s63, s63, s{regs[idx]}")
        A(f"  s_cmp_eq_u32 s28, {w}")
        A("  s_cselect_b32 s62, s60, s62")
        A("  s_cselect_b32 s57, s63, s57")
    A("  s_mov_b32 s52, 0")
    A("  s_mov_b32 s53, 0")
    A("  s_mov_b32 s54, 0")
    A("  s_mov_b32 s55, 0")
    A(f"  v_lshlrev_b32 v{V_RC}, 4, v2")
    A(f"  v_lshlrev_b32 v{V_G32}, 5, v3")
    DPRE = int(os.environ.get("DPRE", "2"))
    for st in range(DPRE):
        issue_a()
        A("  s_waitcnt lgkmcnt(0)")
        issue_b(st)
    A(f"  v_mul_u32_u24 v{V_PL}, {PS}, v2")
    A(f"  v_lshl_add_u32 v{V_PL}, v3, 4, v{V_PL}")
    A(f"  v_mul_u32_u24 v{V_A2L}, {A2S}, v3")
    A(f"  v_add_u32 v{V_A2L}, v{V_A2L}, v{V_RC}")
    A(f"  v_mov_b32 v{V_ONE}, 1")
    A("  s_mov_b32 s60, 0x3f803f80")
    for i in range(4):
        A(f"  v_mov_b32 v{ONES+i}, s60")
    for i in range(36):
        A(f"  v_mov_b32 v{ACC+i}, 0")
    STAMP(3)
    if DPRE < D:
        lds_spin("KB_SDW", KB_SDF, 4, 6, 7)
    for st in range(DPRE, D):
        issue_a()
        A("  s_waitcnt lgkmcnt(0)")
        issue_b(st)
    issue_a()
    lds_spin("KB_GSW", KB_GS, 4, 6, 7)
    STAMP(4)
    A("  s_mov_b32 s56, 0")
    A("KB_LOOP:")
    for st in range(D):
        item_decode(54, 60, 65)
        A(f"  s_mul_i32 s60, s60, {PG}")
        A("  s_lshl_b32 s61, s55, 6")
        A("  s_add_u32 s60, s60, s61")
        A(f"  s_add_u32 s60, s60, {KB_P}")
        A(f"  v_add_u32 v{V_TMP2}, s60, v{V_PL}")
        A(f"  ds_read_b128 {vr(PF,4)}, v{V_TMP2}")
        A(f"  s_waitcnt vmcnt({8*(D-1)})")
        A("  s_waitcnt lgkmcnt(0)")
        consume(st)
        issue_b(st)
        issue_a()
        A("  s_lshl_b32 s61, s54, 2")
        A("  s_lshr_b32 s61, s62, s61")
        A("  s_and_b32 s61, s61, 15")
        A("  s_add_u32 s55, s55, 1")
        A("  s_cmp_lt_u32 s55, s61")
        A(f"  s_cbranch_scc1 KB_NOFIN{st}")
        finalize()
        A("  s_mov_b32 s55, 0")
        A("  s_add_u32 s54, s54, 1")
        A(f"KB_NOFIN{st}:")
        A("  s_add_u32 s56, s56, 1")
        A("  s_cmp_ge_u32 s56, s57")
        A("  s_cbranch_scc1 KB_GDONE")
    A("  s_branch KB_LOOP")
    A("KB_GDONE:")
    STAMP(5); RSTAMP(15); STAMP_OUT(14, 28, 1 << 20)
    A("  s_endpgm")
    A("KB_MS:")
    A("  v_subrev_u32 v38, 256, v0")
    A("  v_lshlrev_b32 v5, 2, v38")
    A(f"  v_add_u32 v5, {KB_EL}, v5")
    for rd in range(5):
        A(f"  ds_read_b32 v{8+rd}, v5 offset:{1024*rd}")
    A("  s_waitcnt lgkmcnt(0)")
    A("  v_readfirstlane_b32 s51, v28")
    A("  s_cmp_lg_u32 s51, 0")
    A("  s_cbranch_scc1 KB_FALLBACK")
    OFFR = [13, 14, 15, 36, 37]
    DDR = 200
    for rd in range(5):
        A(f"  v_cmp_ne_u32 s[{36+2*rd}:{37+2*rd}], -1, v{8+rd}")
        A(f"  v_and_b32 v7, 0xffff, v{8+rd}")
        A(f"  v_lshlrev_b32 v{OFFR[rd]}, 4, v7")
    for rd in range(5):
        A(f"  s_mov_b64 exec, s[{36+2*rd}:{37+2*rd}]")
        A(f"  global_load_dwordx4 {vr(16+4*rd,4)}, v{OFFR[rd]}, s[26:27] sc1")
    A("  s_mov_b64 exec, -1")
    for rd in range(5):
        A(f"  v_lshrrev_b32 v7, 16, v{8+rd}")
        A(f"  v_lshlrev_b32 v7, 5, v7")
        A(f"  v_add_u32 v7, {KB_SD+16}, v7")
        A(f"  s_mov_b64 exec, s[{36+2*rd}:{37+2*rd}]")
        A(f"  ds_read_b128 {vr(DDR+4*rd,4)}, v7")
        A("  s_mov_b64 exec, -1")
    A("  v_lshlrev_b32 v5, 4, v1")
    A("  v_add_u32 v6, 0x10000, v5")
    for i in range(WEARLY):
        wload(i, 5, 6)
    A("  s_mov_b32 s49, 0")
    A(f"  s_waitcnt vmcnt({4*WEARLY})")
    A("  s_branch KB_SCHK")
    A("KB_SRETRY:")
    for rd in range(5):
        A(f"  s_mov_b64 exec, s[{36+2*rd}:{37+2*rd}]")
        A(f"  global_load_dwordx4 {vr(16+4*rd,4)}, v{OFFR[rd]}, s[26:27] sc1")
    A("  s_mov_b64 exec, -1")
    A("  s_waitcnt vmcnt(0)")
    A("KB_SCHK:")
    A("  s_mov_b64 s[46:47], 0")
    for rd in range(5):
        A(f"  s_mov_b64 exec, s[{36+2*rd}:{37+2*rd}]")
        for h in range(4):
            A(f"  v_cmp_eq_u32 vcc, -1, v{16+4*rd+h}")
            A("  s_or_b64 s[46:47], s[46:47], vcc")
    A("  s_mov_b64 exec, -1")
    A("  s_cmp_eq_u64 s[46:47], 0")
    A("  s_cbranch_scc1 KB_SOK")
    A("  s_add_u32 s49, s49, 1")
    A("  s_cmp_ge_u32 s49, 0x40000")
    A("  s_cbranch_scc1 KB_SOK")
    A("  s_sleep 2")
    A("  s_branch KB_SRETRY")
    A("KB_SOK:")
    if DIAG:
        A("  s_mov_b32 s90, s49")
    lds_signal(KB_SDF, 6, 7)
    STAMP(3)
    A("  s_mov_b32 s60, 0x3e4ccccd")
    for rd in range(5):
        S = 16 + 4 * rd
        Dd = DDR + 4 * rd
        A(f"  s_mov_b64 exec, s[{36+2*rd}:{37+2*rd}]")
        for h in range(4):
            A(f"  v_add_f32 v{S+h}, v{S+h}, v{Dd+h}")
        for h in range(4):
            A(f"  v_mul_f32 v{Dd+h}, s60, v{S+h}")
        for h in range(4):
            A(f"  v_max_f32 v{S+h}, v{S+h}, v{Dd+h}")
        for h in range(4):
            A(f"  v_exp_f32 v{S+h}, v{S+h}")
        A(f"  v_add_u32 v6, {256*rd}, v38")
        A("  v_lshrrev_b32 v7, 7, v6")
        A(f"  v_mul_u32_u24 v7, {PG}, v7")
        A("  v_and_b32 v6, 127, v6")
        A("  v_lshl_add_u32 v7, v6, 1, v7")
        A(f"  v_bfe_u32 v6, v{8+rd}, 16, 2")
        A(f"  v_mul_u32_u24 v6, {4*PS}, v6")
        A("  v_add_u32 v7, v7, v6")
        A(f"  v_add_u32 v7, {KB_P}, v7")
        A(f"  v_cvt_pk_bf16_f32 v{Dd}, v{S}, v{S+1}")
        A(f"  v_cvt_pk_bf16_f32 v{Dd+1}, v{S+2}, v{S+3}")
        A(f"  ds_write_b16 v7, v{Dd}")
        A(f"  ds_write_b16_d16_hi v7, v{Dd} offset:{PS}")
        A(f"  ds_write_b16 v7, v{Dd+1} offset:{2*PS}")
        A(f"  ds_write_b16_d16_hi v7, v{Dd+1} offset:{3*PS}")
    A("  s_mov_b64 exec, -1")
    lds_signal(KB_GS, 6, 7)
    SPF = os.environ.get("SPF", "0")
    if SPF == "2":
        spf_code()
    gemm_setup()
    for i in range(WEARLY, RW):
        wload(i)
    if SPF == "1":
        spf_code()
    A("  s_branch KB_MW2")
    A("KB_FALLBACK:")
    gen_fallback()
    A(f"  v_mov_b32 v7, {KB_DONE}")
    A("  v_mov_b32 v8, 10")
    A("  v_mov_b32 v9, 10")
    A("  ds_write_b64 v7, v[8:9]")
    A("  s_waitcnt vmcnt(0) lgkmcnt(0)")
    A("  s_barrier")
    A("  s_cmp_lt_u32 s28, 4")
    A("  s_cbranch_scc1 KB_END")
    A("KB_MW:")
    gemm_setup()
    for i in range(RW):
        wload(i)
    A("KB_MW2:")
    STAMP(4)
    gen_gemm()
    STAMP(7); RSTAMP(15); STAMP_OUT(14, 28, 1 << 20)
    A("KB_END:")
    A("  s_endpgm")

def gen_fallback():
    A("  s_mov_b32 s62, 0")
    A("  v_lshlrev_b32 v48, 3, v1")
    A("  v_lshlrev_b32 v49, 2, v1")
    A("  s_mov_b32 s66, 0x3e4ccccd")
    A("  s_mov_b32 s67, 0xffff0000")
    A("KF_NODE:")
    A("  s_mul_i32 s63, s28, 5")
    A("  s_add_u32 s63, s63, s62")
    A("  s_add_u32 s64, s63, s29")
    for i in range(20):
        A(f"  v_mov_b32 v{16+i}, 0")
    A("  s_lshl_b32 s60, s63, 5")
    A(f"  s_add_u32 s60, s60, {KB_SD+16}")
    A("  v_mov_b32 v7, s60")
    A("  ds_read_b128 v[36:39], v7")
    A("  s_mov_b32 s65, 0")
    A("KF_CHUNK:")
    A("  v_add_u32 v50, s65, v49")
    A("  global_load_dword v40, v50, s[8:9]")
    A("  global_load_dword v41, v50, s[6:7]")
    A("  s_waitcnt vmcnt(0) lgkmcnt(0)")
    A("  v_cmp_eq_u32 s[68:69], s64, v40")
    A("  s_nop 1")
    A("KF_EDGE:")
    A("  s_cmp_eq_u64 s[68:69], 0")
    A("  s_cbranch_scc1 KF_NEXT")
    A("  s_ff1_i32_b64 s60, s[68:69]")
    A("  s_bitset0_b64 s[68:69], s60")
    A("  v_readlane_b32 s61, v41, s60")
    A("  s_nop 3")
    A("  s_lshl_b32 s60, s61, 9")
    A("  v_add_u32 v50, s60, v48")
    A("  buffer_load_dwordx2 v[42:43], v50, s[16:19], 0 offen")
    A("  s_lshl_b32 s60, s61, 4")
    A("  v_mov_b32 v51, s60")
    A("  s_mov_b32 s61, 0")
    A("KF_SRETRY:")
    A("  global_load_dwordx4 v[44:47], v51, s[26:27] sc1")
    A("  s_waitcnt vmcnt(0)")
    A("  s_mov_b64 s[42:43], 0")
    for h in range(4):
        A(f"  v_cmp_eq_u32 vcc, -1, v{44+h}")
        A("  s_or_b64 s[42:43], s[42:43], vcc")
    A("  s_cmp_eq_u64 s[42:43], 0")
    A("  s_cbranch_scc1 KF_SOK")
    A("  s_add_u32 s61, s61, 1")
    A("  s_cmp_ge_u32 s61, 0x40000")
    A("  s_cbranch_scc1 KF_SOK")
    A("  s_sleep 4")
    A("  s_branch KF_SRETRY")
    A("KF_SOK:")
    for h in range(4):
        A(f"  v_add_f32 v{44+h}, v{44+h}, v{36+h}")
        A(f"  v_mul_f32 v52, s66, v{44+h}")
        A(f"  v_max_f32 v{44+h}, v{44+h}, v52")
        A(f"  v_exp_f32 v{44+h}, v{44+h}")
    A("  s_nop 0")
    A("  v_cvt_pk_bf16_f32 v52, v44, v45")
    A("  v_cvt_pk_bf16_f32 v53, v46, v47")
    A("  v_lshlrev_b32 v44, 16, v52")
    A("  v_and_b32 v45, s67, v52")
    A("  v_lshlrev_b32 v46, 16, v53")
    A("  v_and_b32 v47, s67, v53")
    A("  v_lshlrev_b32 v52, 16, v42")
    A("  v_and_b32 v53, s67, v42")
    A("  v_lshlrev_b32 v54, 16, v43")
    A("  v_and_b32 v55, s67, v43")
    for h in range(4):
        A(f"  v_add_f32 v{32+h}, v{32+h}, v{44+h}")
        for f in range(4):
            A(f"  v_fma_f32 v{16+4*h+f}, v{44+h}, v{52+f}, v{16+4*h+f}")
    A("  s_branch KF_EDGE")
    A("KF_NEXT:")
    A("  s_add_u32 s65, s65, 256")
    A(f"  s_cmp_lt_u32 s65, {E*4}")
    A("  s_cbranch_scc1 KF_CHUNK")
    A("  s_mov_b32 s61, 0x3089705f")
    A(f"  s_mul_i32 s60, s63, {A2S}")
    A("  v_add_u32 v50, s60, v48")
    for h in range(4):
        A(f"  v_add_f32 v{32+h}, s61, v{32+h}")
        A(f"  v_rcp_f32 v{32+h}, v{32+h}")
        A("  s_nop 0")
        A(f"  v_mul_f32 v{32+h}, 0.25, v{32+h}")
        for f in range(4):
            A(f"  v_mul_f32 v{16+4*h+f}, v{16+4*h+f}, v{32+h}")
        A(f"  v_cvt_pk_bf16_f32 v52, v{16+4*h}, v{17+4*h}")
        A(f"  v_cvt_pk_bf16_f32 v53, v{18+4*h}, v{19+4*h}")
        A(f"  ds_write_b64 v50, v[52:53] offset:{h*512}")
    A("  s_add_u32 s62, s62, 1")
    A("  s_cmp_lt_u32 s62, 5")
    A("  s_cbranch_scc1 KF_NODE")

RW = 10
WR = 40
AF = 200
GACC = 224 - 0
def gacc(mt, nt):
    i = mt * 4 + nt
    if i < 8:
        return 224 + 4 * i
    return 24 + 4 * (i - 8)
VW0 = 4
VW1 = 5
VA0 = 6
VA1 = 7
VAB = 8
VAB = 13

def gemm_setup():
    A(f"  v_lshlrev_b32 v{VW0}, 4, v1")
    A(f"  v_add_u32 v{VW1}, 0x10000, v{VW0}")
    A(f"  v_mul_u32_u24 v{VAB}, {A2S}, v2")
    A(f"  v_lshl_add_u32 v{VAB}, v3, 4, v{VAB}")
    A("  s_and_b32 s66, s2, 15")

def kidx(i):
    half = i >> 4
    A(f"  s_add_u32 s61, s66, {i & 15}")
    A("  s_and_b32 s61, s61, 15")
    A("  s_lshr_b32 s67, s61, 2")
    A("  s_and_b32 s61, s61, 3")
    A("  s_lshl_b32 s67, s67, 3")
    A("  s_add_u32 s61, s61, s67")
    if half:
        A("  s_add_u32 s61, s61, 4")

def wload(i, a0=None, a1=None):
    a0 = VW0 if a0 is None else a0
    a1 = VW1 if a1 is None else a1
    slot = i % RW
    kidx(i)
    A("  s_lshl_b32 s68, s61, 11")
    b = WR + 16 * slot
    A(f"  buffer_load_dwordx4 {vr(b,4)}, v{a0}, s[20:23], s68 offen")
    A(f"  buffer_load_dwordx4 {vr(b+4,4)}, v{a0}, s[20:23], s68 offen offset:1024")
    A(f"  buffer_load_dwordx4 {vr(b+8,4)}, v{a1}, s[20:23], s68 offen")
    A(f"  buffer_load_dwordx4 {vr(b+12,4)}, v{a1}, s[20:23], s68 offen offset:1024")

def aload(i):
    b = AF + 12 * (i & 1)
    kidx(i)
    A("  s_lshl_b32 s69, s61, 6")
    A(f"  v_add_u32 v{VA0}, s69, v{VAB}")
    A(f"  v_add_u32 v{VA1}, {32*A2S}, v{VA0}")
    A(f"  ds_read_b128 {vr(b,4)}, v{VA0}")
    A(f"  ds_read_b128 {vr(b+4,4)}, v{VA0} offset:{16*A2S}")
    A(f"  ds_read_b128 {vr(b+8,4)}, v{VA1}")

def poll(half):
    A(f"  v_mov_b32 v{VA0}, {KB_DONE + 4*half}")
    A(f"KB_POLL{half}:")
    A(f"  ds_read_b32 v{VA1}, v{VA0}")
    A("  s_waitcnt lgkmcnt(0)")
    A(f"  v_readfirstlane_b32 s60, v{VA1}")
    A("  s_cmp_ge_u32 s60, 10")
    A(f"  s_cbranch_scc1 KB_POLLD{half}")
    A("  s_sleep 2")
    A(f"  s_branch KB_POLL{half}")
    A(f"KB_POLLD{half}:")

def gen_gemm():
    for i in range(32):
        if (i & 15) == 0:
            poll(i >> 4)
            if i == 16: STAMP(6)
            else: STAMP(5)
            aload(i)
        nxt = (i + 1) < 32 and ((i + 1) & 15) != 0
        if nxt:
            aload(i + 1)
        rem = min(RW - 1, 31 - i)
        A(f"  s_waitcnt vmcnt({4*rem})")
        A(f"  s_waitcnt lgkmcnt({3 if nxt else 0})")
        slot = i % RW
        b = AF + 12 * (i & 1)
        for mt in range(3):
            for nt in range(4):
                a = gacc(mt, nt)
                c = "0" if i == 0 else vr(a, 4)
                A(f"  v_mfma_f32_16x16x32_bf16 {vr(a,4)}, {vr(WR+16*slot+4*nt,4)}, {vr(b+4*mt,4)}, {c}")
        if i + RW < 32:
            wload(i + RW)
    A("  v_add_u32 v6, s29, v2")
    A("  v_lshlrev_b32 v6, 9, v6")
    A("  v_lshl_add_u32 v6, v3, 4, v6")
    A("  s_and_b32 s60, s28, 3")
    A("  s_lshl_b32 s60, s60, 7")
    A("  v_add_u32 v6, s60, v6")
    A("  v_add_u32 v7, 0x2000, v6")
    A("  v_add_u32 v8, 0x4000, v6")
    A("  v_cmp_gt_u32 vcc, 8, v2")
    A("  s_nop 4")
    for mt in range(3):
        if mt == 2:
            A("  s_and_saveexec_b64 s[34:35], vcc")
        for p in range(2):
            a0 = gacc(mt, 2 * p); a1 = gacc(mt, 2 * p + 1)
            o = 40 + 8 * mt + 4 * p
            A(f"  v_cvt_pk_bf16_f32 v{o}, v{a0}, v{a0+1}")
            A(f"  v_cvt_pk_bf16_f32 v{o+1}, v{a0+2}, v{a0+3}")
            A(f"  v_cvt_pk_bf16_f32 v{o+2}, v{a1}, v{a1+1}")
            A(f"  v_cvt_pk_bf16_f32 v{o+3}, v{a1+2}, v{a1+3}")
            A(f"  global_store_dwordx4 v{6+mt}, {vr(o,4)}, s[12:13] offset:{64*p}")
    A("  s_mov_b64 exec, -1")

def desc(name, vgpr, sgpr):
    acc = (vgpr + 3) // 4 * 4
    A(f".amdhsa_kernel {name}")
    A(f"  .amdhsa_next_free_vgpr {vgpr}")
    A(f"  .amdhsa_next_free_sgpr {sgpr}")
    A(f"  .amdhsa_accum_offset {acc}")
    A("  .amdhsa_group_segment_fixed_size 0")
    A("  .amdhsa_kernarg_size 72")
    A("  .amdhsa_user_sgpr_count 2")
    A("  .amdhsa_user_sgpr_kernarg_segment_ptr 1")
    A("  .amdhsa_system_sgpr_workgroup_id_x 1")
    A(".end_amdhsa_kernel")

def main():
    A(HEADER.format(lds_a=KA_LDS, lds_b=KB_LDS).rstrip("\n"))
    gen_prep()
    gen_main()
    A('.section .rodata,"a"')
    A(".p2align 6")
    desc("gat_prep_kernel", 96, 102)
    A(".p2align 6")
    desc("gat_main_kernel", 256, 102)
    txt = "\n".join(x for x in out if x is not None) + "\n"
    path = sys.argv[1] if len(sys.argv) > 1 else "standalone__graph_attention_gat__graph.s"
    open(path, "w").write(txt)

main()
```

```python
import sys, os

N = 10000
E = 160000
CELL_BYTES = 16000
STAB_OFF = 4194304
WF_OFF = 5242880
BF_OFF = 6291456
XBYTES = N * 512

DIAG = os.environ.get("DIAG") == "1"
STAMP_OFF = 8 << 20
out = []
def A(s=""):
    out.append(s)
def STAMP(i):
    if not DIAG: return
    A("  s_memtime s[98:99]")
    A("  s_waitcnt lgkmcnt(0)")
    A(f"  s_mov_b32 s{82+i}, s98")
def RSTAMP(i):
    if not DIAG: return
    A("  s_memrealtime s[98:99]")
    A("  s_waitcnt lgkmcnt(0)")
    A(f"  s_mov_b32 s{82+i}, s98")
def STAMP_OUT(wsreg, wavereg, koff, v0=4, v1=5):
    if not DIAG: return
    A("  s_mov_b64 exec, 1")
    A("  s_lshl_b32 s98, s2, 4")
    A(f"  s_add_u32 s98, s98, s{wavereg}")
    A("  s_lshl_b32 s98, s98, 6")
    A(f"  s_add_u32 s98, s98, {STAMP_OFF + koff}")
    A(f"  v_mov_b32 v{v0}, s98")
    for i in range(16):
        A(f"  v_mov_b32 v{v1}, s{82+i}")
        A(f"  global_store_dword v{v0}, v{v1}, s[{wsreg}:{wsreg+1}] offset:{4*i}")
        A("  s_nop 1")

def vr(b, n):
    return f"v[{b}:{b+n-1}]"

HEADER = """; GAT: out[n] = mean_h sum_e alpha[e,h] * (x[src e] @ W_h)  computed as  (sum_e alpha x[src e]) @ W
; kernel 1 (prep): bins edges by dst, W@a vectors, W fragment shuffle, resets the logit table to a sentinel
; @launch kernel=gat_prep_kernel grid=(256,1,1) block=(640,1,1) lds={lds_a}
; @launch kernel=gat_main_kernel grid=(250,1,1) block=(512,1,1) lds={lds_b}
.amdgcn_target "amdgcn-amd-amdhsa--gfx950"
.text
"""

KA_CELLS = 0
KA_CNT = 16000
KA_LDS = 17024

K0SC = os.environ.get("K0SC", "")
def gen_prep():
    A(".globl gat_prep_kernel")
    A(".p2align 8")
    A(".type gat_prep_kernel,@function")
    A("gat_prep_kernel:")
    A("  s_cmp_ge_u32 s2, 256")
    A("  s_cbranch_scc1 KA_END")
    RSTAMP(14); STAMP(0)
    A("  s_load_dwordx8 s[4:11], s[0:1], 0")
    A("  s_load_dwordx4 s[12:15], s[0:1], 32")
    A("  s_load_dwordx2 s[16:17], s[0:1], 64")
    A("  v_lshrrev_b32 v6, 6, v0")
    A("  v_and_b32 v1, 63, v0")
    A("  v_and_b32 v2, 15, v1")
    A("  v_lshrrev_b32 v3, 4, v1")
    A("  v_readfirstlane_b32 s24, v6")
    A("  s_lshr_b32 s25, s2, 4")
    A("  s_and_b32 s26, s2, 15")
    A("  v_mov_b32 v4, 0")
    A("  v_mov_b32 v5, 0")
    A("  s_waitcnt lgkmcnt(0)")
    A("  s_cmp_ge_u32 s2, 250")
    A("  s_cbranch_scc1 KA_NOEDGE")
    A("  s_mul_i32 s27, s2, 2560")
    A("  v_lshl_add_u32 v6, v0, 2, s27")
    A("  global_load_dword v4, v6, s[8:9]")
    A("  global_load_dword v5, v6, s[6:7]")
    A("  s_mul_i32 s27, s2, 640")
    A(f"  s_add_u32 s27, s27, {STAB_OFF}")
    A("  v_lshl_add_u32 v6, v0, 4, s27")
    for i in range(4):
        A(f"  v_mov_b32 v{80+i}, -1")
    A("  v_cmp_gt_u32 vcc, 40, v0")
    A("  s_and_saveexec_b64 s[32:33], vcc")
    A("  s_cbranch_execz KA_NORST")
    A("  global_store_dwordx4 v6, v[80:83], s[16:17]")
    A("KA_NORST:")
    A("  s_mov_b64 exec, s[32:33]")
    A("KA_NOEDGE:")
    A("  s_mov_b32 s36, 0")
    A("  s_cmp_ge_u32 s24, 8")
    A("  s_cbranch_scc1 KA_SHUF_LOAD")
    A("  s_cmp_lg_u32 s24, 0")
    A("  s_cbranch_scc1 KA_INIT")
    A("  s_cmp_ge_u32 s2, 64")
    A("  s_cbranch_scc1 KA_INIT")
    A("  s_mov_b32 s36, 1")
    A("  v_mov_b32 v72, s12")
    A("  v_mov_b32 v73, s13")
    A("  v_mov_b32 v74, s14")
    A("  v_mov_b32 v75, s15")
    A("  v_cmp_eq_u32 vcc, 1, v2")
    A("  s_lshl_b32 s27, s25, 9")
    A("  v_lshlrev_b32 v76, 4, v3")
    A("  v_add_u32 v76, s27, v76")
    A("  v_cndmask_b32 v72, v72, v74, vcc")
    A("  v_cndmask_b32 v73, v73, v75, vcc")
    A("  v_add_co_u32 v72, vcc, v72, v76")
    A("  s_nop 1")
    A("  v_addc_co_u32 v73, vcc, 0, v73, vcc")
    for i in range(32):
        A(f"  v_mov_b32 v{40+i}, 0")
    A("  v_cmp_gt_u32 vcc, 2, v2")
    A("  s_and_saveexec_b64 s[32:33], vcc")
    for kk in range(8):
        A(f"  global_load_dwordx4 {vr(40+4*kk,4)}, v[72:73], off offset:{kk*64}")
    A("  s_mov_b64 exec, s[32:33]")
    A("  s_lshl_b32 s27, s2, 13")
    A("  v_lshlrev_b32 v76, 9, v2")
    A("  v_lshl_add_u32 v76, v3, 4, v76")
    A("  v_add_u32 v76, s27, v76")
    for kk in range(8):
        A(f"  global_load_dwordx4 {vr(8+4*kk,4)}, v76, s[10:11] offset:{kk*64}")
    A("  s_branch KA_INIT")
    A("KA_SHUF_LOAD:")
    A("  s_mov_b32 s36, 2")
    A("  s_lshr_b32 s27, s2, 5")
    A("  s_lshl_b32 s27, s27, 6")
    A("  s_and_b32 s34, s2, 31")
    A("  s_lshl_b32 s34, s34, 14")
    A("  s_add_u32 s27, s27, s34")
    A("  s_sub_u32 s34, s24, 8")
    A("  s_lshl_b32 s34, s34, 3")
    A("  s_add_u32 s27, s27, s34")
    A("  v_lshrrev_b32 v76, 2, v2")
    A("  v_lshlrev_b32 v76, 4, v76")
    A("  v_and_b32 v77, 3, v2")
    A("  v_lshl_add_u32 v76, v77, 1, v76")
    A("  v_lshl_add_u32 v76, v3, 12, v76")
    A("  v_add_u32 v76, s27, v76")
    for j in range(8):
        A(f"  global_load_ushort v{44+j}, v76, s[10:11] offset:{j*512}")
    A("KA_INIT:")
    A("  s_min_u32 s27, s2, 249")
    A("  s_mul_i32 s27, s27, 20480")
    A("  s_lshl_b32 s34, s24, 11")
    A("  s_add_u32 s27, s27, s34")
    A("  v_lshl_add_u32 v88, v1, 4, s27")
    A("  global_load_dwordx4 v[96:99], v88, s[4:5]")
    A("  global_load_dwordx4 v[100:103], v88, s[4:5] offset:1024")
    for i in range(4):
        A(f"  v_mov_b32 v{80+i}, -1")
        A(f"  v_mov_b32 v{84+i}, 0")
    A("  v_lshlrev_b32 v79, 4, v0")
    A(f"  ds_write_b128 v79, v[80:83] offset:{KA_CELLS}")
    A("  v_cmp_gt_u32 vcc, 360, v0")
    A("  s_and_saveexec_b64 s[32:33], vcc")
    A(f"  ds_write_b128 v79, v[80:83] offset:{KA_CELLS+10240}")
    A("  s_mov_b64 exec, s[32:33]")
    A("  v_cmp_gt_u32 vcc, 64, v0")
    A("  s_and_saveexec_b64 s[32:33], vcc")
    A(f"  ds_write_b128 v79, v[84:87] offset:{KA_CNT}")
    A("  s_mov_b64 exec, s[32:33]")
    A("  s_waitcnt lgkmcnt(0)")
    A("  s_barrier")
    STAMP(1)
    A("  s_cmp_ge_u32 s2, 250")
    A("  s_cbranch_scc1 KA_NOPART")
    A("  s_cmp_eq_u32 s36, 1")
    A("  s_cbranch_scc1 KA_PW1")
    A("  s_cmp_eq_u32 s36, 2")
    A("  s_cbranch_scc1 KA_PW2")
    A("  s_waitcnt vmcnt(2)")
    A("  s_branch KA_PW3")
    A("KA_PW1:")
    A("  s_waitcnt vmcnt(18)")
    A("  s_branch KA_PW3")
    A("KA_PW2:")
    A("  s_waitcnt vmcnt(10)")
    A("KA_PW3:")
    A("  v_mul_u32_u24 v6, 52429, v4")
    A("  v_lshrrev_b32 v6, 21, v6")
    A("  v_mul_u32_u24 v7, 40, v6")
    A("  v_sub_u32 v7, v4, v7")
    A("  v_lshl_or_b32 v7, v7, 16, v5")
    A("  v_lshlrev_b32 v88, 2, v6")
    A("  v_mov_b32 v89, 1")
    A(f"  ds_add_rtn_u32 v90, v88, v89 offset:{KA_CNT}")
    A("  v_mov_b32 v91, 0xfffffffe")
    A("  v_lshlrev_b32 v88, 6, v6")
    A("  s_waitcnt lgkmcnt(0)")
    A("  v_cmp_gt_u32 vcc, 15, v90")
    A("  v_min_u32 v90, 15, v90")
    A("  v_lshl_add_u32 v88, v90, 2, v88")
    A("  v_cndmask_b32 v7, v91, v7, vcc")
    A(f"  ds_write_b32 v88, v7 offset:{KA_CELLS}")
    A("KA_NOPART:")
    A("  s_waitcnt lgkmcnt(0)")
    A("  s_barrier")
    STAMP(2)
    A("  s_cmp_ge_u32 s2, 250")
    A("  s_cbranch_scc1 KA_NOCOPY")
    A(f"  ds_read_b128 v[80:83], v79 offset:{KA_CELLS}")
    A(f"  ds_read_b128 v[84:87], v79 offset:{KA_CELLS+10240}")
    A("  v_lshrrev_b32 v88, 2, v0")
    A(f"  v_mul_u32_u24 v88, {CELL_BYTES}, v88")
    A("  v_and_b32 v89, 3, v0")
    A("  v_lshl_add_u32 v88, v89, 4, v88")
    A("  s_lshl_b32 s27, s2, 6")
    A("  v_add_u32 v88, s27, v88")
    A(f"  v_add_u32 v89, {160*CELL_BYTES}, v88")
    A("  s_waitcnt lgkmcnt(0)")
    A("  global_store_dwordx4 v88, v[80:83], s[16:17]"+K0SC)
    A("  v_cmp_gt_u32 vcc, 360, v0")
    A("  s_and_saveexec_b64 s[32:33], vcc")
    A("  s_cbranch_execz KA_CP2")
    A("  global_store_dwordx4 v89, v[84:87], s[16:17]"+K0SC)
    A("KA_CP2:")
    A("  s_mov_b64 exec, s[32:33]")
    A("KA_NOCOPY:")
    STAMP(3)
    A("  s_cmp_eq_u32 s36, 0")
    A("  s_cbranch_scc1 KA_FIN")
    A("  s_cmp_eq_u32 s36, 2")
    A("  s_cbranch_scc1 KA_SHUF_ST")
    A("  s_waitcnt vmcnt(0)")
    for kk in range(8):
        c = "0" if kk == 0 else "v[92:95]"
        A(f"  v_mfma_f32_16x16x32_bf16 v[92:95], {vr(8+4*kk,4)}, {vr(40+4*kk,4)}, {c}")
    A("  s_lshr_b32 s27, s26, 1")
    A("  s_lshl_b32 s27, s27, 10")
    A("  s_and_b32 s34, s26, 1")
    A("  s_lshl_b32 s34, s34, 9")
    A("  s_add_u32 s27, s27, s34")
    A("  s_lshl_b32 s34, s25, 6")
    A("  s_add_u32 s27, s27, s34")
    A(f"  s_add_u32 s27, s27, {BF_OFF}")
    A("  v_lshrrev_b32 v88, 1, v3")
    A("  v_lshlrev_b32 v88, 8, v88")
    A("  v_lshl_add_u32 v88, v2, 5, v88")
    A("  v_and_b32 v89, 1, v3")
    A("  v_lshl_add_u32 v88, v89, 3, v88")
    A("  v_add_u32 v88, s27, v88")
    A("  s_mov_b32 s34, 0x3fb8aa3b")
    A("  s_mov_b32 s35, 0xffff0000")
    A("  v_cmp_gt_u32 vcc, 2, v2")
    A("  s_nop 1")
    b = 92
    for r in range(4):
        A(f"  v_mul_f32 v{b+r}, s34, v{b+r}")
    A(f"  v_cvt_pk_bf16_f32 v80, v{b}, v{b+1}")
    A(f"  v_cvt_pk_bf16_f32 v81, v{b+2}, v{b+3}")
    A("  v_lshlrev_b32 v82, 16, v80")
    A("  v_and_b32 v83, s35, v80")
    A("  v_lshlrev_b32 v84, 16, v81")
    A("  v_and_b32 v85, s35, v81")
    for r in range(4):
        A(f"  v_sub_f32 v{82+r}, v{b+r}, v{82+r}")
    A("  v_cvt_pk_bf16_f32 v82, v82, v83")
    A("  v_cvt_pk_bf16_f32 v83, v84, v85")
    A("  s_and_saveexec_b64 s[32:33], vcc")
    A("  global_store_dwordx2 v88, v[80:81], s[16:17]")
    A("  global_store_dwordx2 v88, v[82:83], s[16:17] offset:16")
    A("  s_mov_b64 exec, s[32:33]")
    A("  s_branch KA_FIN")
    A("KA_SHUF_ST:")
    A("  s_waitcnt vmcnt(0)")
    for t in range(4):
        A(f"  v_lshl_or_b32 v{40+t}, v{45+2*t}, 16, v{44+2*t}")
    A("  s_lshl_b32 s27, s2, 11")
    A(f"  s_add_u32 s27, s27, {WF_OFF - 512*16}")
    A("  v_lshl_add_u32 v88, v0, 4, s27")
    A("  global_store_dwordx4 v88, v[40:43], s[16:17]"+K0SC)
    A("KA_FIN:")
    L2W = int(os.environ.get("L2W", "0"))
    if L2W:
        A("  s_mov_b32 s40, s4")
        A("  s_and_b32 s41, s5, 0xffff")
        A(f"  s_mov_b32 s42, {XBYTES}")
        A("  s_mov_b32 s43, 0x20000")
        A("  s_lshr_b32 s27, s2, 3")
        A("  s_mul_i32 s27, s27, 160000")
        A("  s_mul_i32 s34, s24, 16000")
        A("  s_add_u32 s27, s27, s34")
        A("  v_lshl_add_u32 v88, v1, 4, s27")
        for i in range(L2W):
            A(f"  buffer_load_dwordx4 v[96:99], v88, s[40:43], 0 offen")
            A("  v_add_u32 v88, 0x400, v88")
    STAMP(4); RSTAMP(15); STAMP_OUT(16, 24, 0)
    A("KA_END:")
    A("  s_endpgm")

A2S = 2064
KB_A2 = 0
KB_P = 40 * A2S
PS = 272
PG = 16 * PS
KB_EL = KB_P + 10 * PG
KB_DUMMY = KB_EL + 5120
KB_SD = KB_DUMMY + 128
KB_CNT = KB_SD + 1536
KB_FLAG = KB_CNT + 48
KB_DONE = KB_CNT + 52
KB_LDS = KB_CNT + 64

D = 4
RB = 40
ACC = 168
DEN = 200
T0 = 204
PF = 220
ENT = 224
AD = 232
ONES = 240
V_RC = 244
V_G32 = 245
V_PL = 246
V_A2L = 247
V_TMP = 248
V_TMP2 = 249
V_ONE = 250

V_TE = 251
V_TP = 252
V_TA = 253
PF2 = 36

def issue_next_item():
    A(f"  v_readlane_b32 s61, v{V_TE}, s52")
    A("  s_add_u32 s52, s52, 1")
    A("  s_min_u32 s52, s52, 63")
    A("  s_and_b32 s44, s61, 0x3ffff")
    A("  s_bfe_u32 s53, s61, 0x40012")
    A("  s_lshr_b32 s64, s61, 14")
    A("  s_and_b32 s64, s64, 0x100")

OOL = []
def ool(label, back, fn):
    OOL.append((label, back, fn))
def emit_ool():
    for label, back, fn in OOL:
        A(f"{label}:")
        fn()
        A(f"  s_branch {back}")
    OOL.clear()

IA = [0]
def issue_a():
    n = IA[0]; IA[0] += 1
    A("  s_cmp_eq_u32 s53, 0")
    A(f"  s_cbranch_scc1 IAO_{n}")
    ool(f"IAO_{n}", f"IA_{n}", issue_next_item)
    A(f"IA_{n}:")
    A(f"  v_add_u32 v{V_TMP}, s44, v{V_G32}")
    A(f"  ds_read_b128 {vr(ENT,4)}, v{V_TMP}")
    A(f"  ds_read_b128 {vr(ENT+4,4)}, v{V_TMP} offset:16")
    A("  s_add_u32 s44, s44, 128")
    A("  s_sub_u32 s53, s53, 1")

def issue_b(st):
    for i in range(8):
        A(f"  v_mad_u32_u16 v{AD+i}, v{ENT+i}, s32, v{V_RC}")
    for i in range(8):
        A(f"  buffer_load_dwordx4 {vr(RB+32*st+4*i,4)}, v{AD+i}, s[16:19], s64 offen")

def perms(st, q, tb):
    R = lambda i: RB + 32 * st + 4 * i + q
    for t in range(4):
        A(f"  v_perm_b32 v{tb+t}, v{R(2*t+1)}, v{R(2*t)}, s30")
    for t in range(4):
        A(f"  v_perm_b32 v{tb+4+t}, v{R(2*t+1)}, v{R(2*t)}, s31")

def mf1(q, u, tb, pf, first):
    a = ACC + 4 * (2 * q + u)
    c = "0" if first else vr(a, 4)
    A(f"  v_mfma_f32_16x16x32_bf16 {vr(a,4)}, {vr(pf,4)}, {vr(tb+4*u,4)}, {c}")

def consume(st, pf, first):
    TA, TB = T0, T0 + 8
    R = lambda i, q: RB + 32 * st + 4 * i + q
    def P(q, tb, u):
        sel = "s30" if u == 0 else "s31"
        for t in range(4):
            A(f"  v_perm_b32 v{tb+4*u+t}, v{R(2*t+1,q)}, v{R(2*t,q)}, {sel}")
    c = "0" if first else vr(DEN, 4)
    P(0, TA, 0)
    A(f"  v_mfma_f32_16x16x32_bf16 {vr(DEN,4)}, {vr(pf,4)}, {vr(ONES,4)}, {c}")
    P(0, TA, 1)
    mf1(0, 0, TA, pf, first)
    P(1, TB, 0)
    mf1(0, 1, TA, pf, first)
    P(1, TB, 1)
    mf1(1, 0, TB, pf, first)
    P(2, TA, 0)
    mf1(1, 1, TB, pf, first)
    P(2, TA, 1)
    mf1(2, 0, TA, pf, first)
    P(3, TB, 0)
    mf1(2, 1, TA, pf, first)
    P(3, TB, 1)
    mf1(3, 0, TB, pf, first)

def consume_tail(pf, first):
    mf1(3, 1, T0 + 8, pf, first)

def finalize():
    A("  s_and_b32 s60, s45, 0xfffff")
    A(f"  v_add_u32 v{V_TMP2}, s60, v{V_A2L}")
    A("  s_mov_b32 s61, 0x3089705f")
    for r in range(4):
        A(f"  v_add_f32 v{DEN+r}, s61, v{DEN+r}")
    for r in range(4):
        A(f"  v_rcp_f32 v{DEN+r}, v{DEN+r}")
    A("  s_lshr_b32 s65, s45, 20")
    A("  s_lshl_b32 s65, s65, 2")
    A(f"  s_add_u32 s65, s65, {KB_DONE}")
    for r in range(4):
        A(f"  v_mul_f32 v{DEN+r}, 0.25, v{DEN+r}")
    for j in range(8):
        A(f"  v_pk_mul_f32 {vr(ACC+4*j,2)}, {vr(ACC+4*j,2)}, {vr(DEN,2)}")
        A(f"  v_pk_mul_f32 {vr(ACC+4*j+2,2)}, {vr(ACC+4*j+2,2)}, {vr(DEN+2,2)}")
    for r in range(4):
        tb = T0 + 4 * (r & 3)
        for t in range(4):
            A(f"  v_cvt_pk_bf16_f32 v{tb+t}, v{ACC+4*(2*t)+r}, v{ACC+4*(2*t+1)+r}")
        A(f"  ds_write_b128 v{V_TMP2}, {vr(tb,4)} offset:{r*512}")

def signal_pending(n):
    def body():
        A(f"  v_mov_b32 v{V_TMP2}, s65")
        A("  s_mov_b64 exec, 1")
        A(f"  ds_add_u32 v{V_TMP2}, v{V_ONE}")
        A("  s_mov_b64 exec, -1")
        A("  s_mov_b32 s65, 0")
    A("  s_cmp_lg_u32 s65, 0")
    A(f"  s_cbranch_scc1 SPO_{n}")
    ool(f"SPO_{n}", f"SP_{n}", body)
    A(f"SP_{n}:")

def cons_next_item():
    A(f"  v_readlane_b32 s61, v{V_TP}, s54")
    A(f"  v_readlane_b32 s42, v{V_TA}, s54")
    A("  s_add_u32 s54, s54, 1")
    A("  s_min_u32 s54, s54, 63")
    A("  s_and_b32 s43, s61, 0x3ffff")
    A("  s_lshr_b32 s55, s61, 18")

def lds_spin(name, addr, target, vtmp, vtmp2):
    A(f"  v_mov_b32 v{vtmp}, {addr}")
    A(f"{name}:")
    A(f"  ds_read_b32 v{vtmp2}, v{vtmp}")
    A("  s_waitcnt lgkmcnt(0)")
    A(f"  v_readfirstlane_b32 s60, v{vtmp2}")
    A(f"  s_cmp_ge_u32 s60, {target}")
    A(f"  s_cbranch_scc1 {name}_D")
    A("  s_sleep 1")
    A(f"  s_branch {name}")
    A(f"{name}_D:")

def lds_signal(addr, vtmp, vone):
    A(f"  v_mov_b32 v{vtmp}, {addr}")
    A(f"  v_mov_b32 v{vone}, 1")
    A("  s_waitcnt lgkmcnt(0)")
    A("  s_mov_b64 exec, 1")
    A(f"  ds_add_u32 v{vtmp}, v{vone}")
    A("  s_mov_b64 exec, -1")

DPRE = int(os.environ.get("DPRE", "2"))
WEARLY = int(os.environ.get("WEARLY", "0"))
KB_SDF = KB_CNT + 40
KB_GS = KB_CNT + 44
WPRE = int(os.environ.get("WPRE", "0"))

def spf_code():
    for rd in range(5):
        A(f"SPF_L{rd}:")
        A(f"  s_cmp_eq_u64 s[{36+2*rd}:{37+2*rd}], 0")
        A(f"  s_cbranch_scc1 SPF_D{rd}")
        A(f"  s_ff1_i32_b64 s60, s[{36+2*rd}:{37+2*rd}]")
        A(f"  s_bitset0_b64 s[{36+2*rd}:{37+2*rd}], s60")
        A(f"  v_readlane_b32 s61, v{8+rd}, s60")
        A("  s_and_b32 s61, s61, 0xffff")
        A("  s_lshl_b32 s61, s61, 9")
        A("  s_add_u32 s60, s61, 256")
        A("  s_add_u32 s61, s61, 384")
        A("  s_load_dword s46, s[4:5], s60")
        A("  s_load_dword s47, s[4:5], s61")
        A(f"  s_branch SPF_L{rd}")
        A(f"SPF_D{rd}:")
    A("  s_waitcnt lgkmcnt(0)")

def SEC(i):
    if os.environ.get("SECT") != "1": return
    A("  s_memtime s[98:99]")
    A("  s_waitcnt lgkmcnt(0)")
    A("  s_sub_u32 s99, s98, s97")
    A(f"  s_add_u32 s{88+i}, s{88+i}, s99")
    A("  s_mov_b32 s97, s98")

def gen_main():
    A(".globl gat_main_kernel")
    A(".p2align 8")
    A(".type gat_main_kernel,@function")
    A("gat_main_kernel:")
    A("  s_cmp_ge_u32 s2, 250")
    A("  s_cbranch_scc1 KB_END")
    RSTAMP(14); STAMP(0)
    A("  s_load_dwordx4 s[4:7], s[0:1], 0")
    A("  s_load_dwordx2 s[8:9], s[0:1], 16")
    A("  s_load_dwordx2 s[12:13], s[0:1], 48")
    A("  s_load_dwordx2 s[14:15], s[0:1], 64")
    A("  v_lshrrev_b32 v6, 6, v0")
    A("  v_and_b32 v1, 63, v0")
    A("  v_and_b32 v2, 15, v1")
    A("  v_lshrrev_b32 v3, 4, v1")
    A("  v_readfirstlane_b32 s28, v6")
    A("  s_mul_i32 s29, s2, 40")
    A("  s_mov_b32 s30, 0x05040100")
    A("  s_mov_b32 s31, 0x07060302")
    A("  s_movk_i32 s32, 0x200")
    A("  s_mov_b32 s33, 0xfffffffe")
    A("  s_and_b32 s66, s2, 15")
    A("  v_lshlrev_b32 v4, 4, v0")
    for i in range(4):
        A(f"  v_mov_b32 v{12+i}, -1")
    A("  s_sub_u32 s50, s28, 4")
    A("  s_waitcnt lgkmcnt(0)")
    A("  s_mov_b32 s16, s4")
    A("  s_and_b32 s17, s5, 0xffff")
    A(f"  s_mov_b32 s18, {XBYTES}")
    A("  s_mov_b32 s19, 0x20000")
    A("  s_cmp_ge_u32 s50, 3")
    A("  s_cbranch_scc1 KB_CELLS")
    A("  s_lshl_b32 s60, s50, 4")
    A("  s_add_u32 s60, s60, s29")
    A("  v_add_u32 v6, s60, v2")
    A("  v_lshlrev_b32 v6, 9, v6")
    A("  v_lshl_add_u32 v6, v3, 4, v6")
    A(f"  s_add_u32 s60, s14, {BF_OFF}")
    A("  s_addc_u32 s61, s15, 0")
    A("  v_lshlrev_b32 v7, 4, v1")
    A("  v_add_u32 v5, 0x1000, v7")
    for kk in range(8):
        A(f"  buffer_load_dwordx4 {vr(64+4*kk,4)}, v6, s[16:19], 0 offen offset:{kk*64}")
        A(f"  global_load_dwordx4 {vr(96+4*kk,4)}, v{7 if kk<4 else 5}, s[60:61] offset:{(kk&3)*1024}")
    A("KB_CELLS:")
    A(f"  s_mul_i32 s60, s2, {CELL_BYTES}")
    A("  s_add_u32 s24, s14, s60")
    A("  s_addc_u32 s25, s15, 0")
    A("  v_add_u32 v5, 0x2000, v4")
    A("  global_load_dwordx4 v[8:11], v4, s[24:25]")
    A("  v_cmp_gt_u32 vcc, 488, v0")
    A("  s_and_saveexec_b64 s[34:35], vcc")
    A("  global_load_dwordx4 v[12:15], v5, s[24:25]")
    A("  s_mov_b64 exec, s[34:35]")
    A(f"  s_add_u32 s26, s14, {STAB_OFF}")
    A("  s_addc_u32 s27, s15, 0")
    A("  s_and_b32 s60, s28, 3")
    A("  s_lshl_b32 s60, s60, 17")
    A(f"  s_add_u32 s60, s60, {WF_OFF}")
    A("  s_add_u32 s20, s14, s60")
    A("  s_addc_u32 s21, s15, 0")
    A("  s_and_b32 s21, s21, 0xffff")
    A("  s_mov_b32 s22, 131072")
    A("  s_mov_b32 s23, 0x20000")
    for i in range(4):
        A(f"  v_mov_b32 v{20+i}, 0")
        A(f"  v_mov_b32 v{24+i}, -1")
    A(f"  v_add_u32 v5, {KB_P}, v4")
    for k in range(5):
        A(f"  ds_write_b128 v5, v[20:23] offset:{k*8192}")
    A("  v_cmp_gt_u32 vcc, 160, v0")
    A("  s_and_saveexec_b64 s[34:35], vcc")
    A(f"  ds_write_b128 v5, v[20:23] offset:{5*8192}")
    A("  s_mov_b64 exec, s[34:35]")
    A(f"  v_add_u32 v5, {KB_EL}, v4")
    A("  v_cmp_gt_u32 vcc, 328, v0")
    A("  s_and_saveexec_b64 s[34:35], vcc")
    A("  ds_write_b128 v5, v[24:27]")
    A("  s_mov_b64 exec, s[34:35]")
    A(f"  v_add_u32 v5, {KB_CNT}, v4")
    A("  v_cmp_gt_u32 vcc, 4, v0")
    A("  s_and_saveexec_b64 s[34:35], vcc")
    A("  ds_write_b128 v5, v[20:23]")
    A("  s_mov_b64 exec, s[34:35]")
    A("  s_cmp_ge_u32 s50, 3")
    A("  s_cbranch_scc1 KB_NOS")
    for kk in range(8):
        A(f"  s_waitcnt vmcnt({16-2*kk})")
        c = "0" if kk == 0 else "v[28:31]"
        A(f"  v_mfma_f32_16x16x32_bf16 v[28:31], {vr(64+4*kk,4)}, {vr(96+4*kk,4)}, {c}")
    A("  s_lshl_b32 s60, s50, 9")
    A(f"  s_add_u32 s60, s60, {KB_SD}")
    A("  v_lshlrev_b32 v6, 7, v3")
    A("  v_bfe_u32 v7, v2, 1, 1")
    A("  v_lshl_add_u32 v6, v7, 4, v6")
    A("  v_lshrrev_b32 v7, 2, v2")
    A("  v_lshl_add_u32 v6, v7, 2, v6")
    A("  v_add_u32 v6, s60, v6")
    A("  v_lshl_add_u32 v16, v1, 5, s60")
    A("  s_lshl_b32 s61, s50, 4")
    A("  v_add_u32 v17, s61, v1")
    A("  v_add_u32 v18, s29, v17")
    A("  v_lshlrev_b32 v18, 4, v18")
    A("  v_and_b32 v7, 1, v2")
    A("  v_cmp_eq_u32 vcc, 0, v7")
    A("  v_cmp_gt_u32 s[42:43], 40, v17")
    for r in range(4):
        A(f"  v_add_f32_dpp v{32+r}, v{28+r}, v{28+r} quad_perm:[1,0,3,2] row_mask:0xf bank_mask:0xf")
    A("  s_and_saveexec_b64 s[34:35], vcc")
    for r in range(4):
        A(f"  ds_write_b32 v6, v{32+r} offset:{r*32}")
    A("  s_and_b64 exec, s[42:43], 0xffff")
    A("  s_waitcnt lgkmcnt(0)")
    A("  ds_read_b128 v[32:35], v16")
    A("  s_waitcnt lgkmcnt(0)")
    A("  global_store_dwordx4 v18, v[32:35], s[26:27] sc1")
    A("  s_mov_b64 exec, -1")
    A("  s_waitcnt vmcnt(1)")
    A("  s_branch KB_B0")
    A("KB_NOS:")
    A("  s_waitcnt vmcnt(0)")
    A("KB_B0:")
    A("  s_waitcnt lgkmcnt(0)")
    A("  s_barrier")
    STAMP(1)
    A("  s_mov_b64 s[34:35], 0")
    A("  v_mov_b32 v6, 1")
    for e in range(8):
        A(f"  v_cmp_gt_u32 s[{36+2*e}:{37+2*e}], s33, v{8+e}")
        A(f"  v_cmp_eq_u32 vcc, s33, v{8+e}")
        A(f"  v_lshrrev_b32 v{16+e}, 18, v{8+e}")
        A("  s_or_b64 s[34:35], s[34:35], vcc")
        A(f"  v_lshlrev_b32 v7, 2, v{16+e}")
        A(f"  v_add_u32 v7, {KB_CNT}, v7")
        A(f"  s_mov_b64 exec, s[{36+2*e}:{37+2*e}]")
        A(f"  ds_add_rtn_u32 v{24+e}, v7, v6")
        A("  s_mov_b64 exec, -1")
    A("  s_waitcnt lgkmcnt(0)")
    for e in range(8):
        A(f"  s_mov_b64 exec, s[{36+2*e}:{37+2*e}]")
        A(f"  v_cmp_lt_u32 vcc, 127, v{24+e}")
        A(f"  v_min_u32 v{24+e}, 127, v{24+e}")
        A(f"  v_lshlrev_b32 v7, 9, v{16+e}")
        A("  s_or_b64 s[34:35], s[34:35], vcc")
        A(f"  v_lshl_add_u32 v7, v{24+e}, 2, v7")
        A(f"  v_add_u32 v7, {KB_EL}, v7")
        A(f"  ds_write_b32 v7, v{8+e}")
    A("  s_mov_b64 exec, -1")
    A("  s_cmp_eq_u64 s[34:35], 0")
    A("  s_cbranch_scc1 KB_NOFLAG")
    A(f"  v_mov_b32 v7, {KB_FLAG}")
    A("  ds_write_b32 v7, v6")
    A("KB_NOFLAG:")
    A("  s_waitcnt lgkmcnt(0)")
    A("  s_barrier")
    STAMP(2)
    A(f"  v_mov_b32 v7, {KB_CNT}")
    A("  ds_read_b32 v28, v7 offset:48")
    A("  s_cmp_ge_u32 s28, 4")
    A("  s_cbranch_scc1 KB_MS")
    A("  ds_read_b128 v[16:19], v7")
    A("  ds_read_b128 v[20:23], v7 offset:16")
    A("  ds_read_b128 v[24:27], v7 offset:32")
    A("  s_waitcnt lgkmcnt(0)")
    A("  v_readfirstlane_b32 s51, v28")
    for i in range(10):
        A(f"  v_readfirstlane_b32 s{70+i}, v{16+i}")
    A("  s_cmp_lg_u32 s51, 0")
    A("  s_cbranch_scc1 KB_FALLBACK")
    for i in range(10):
        A(f"  s_add_u32 s{70+i}, s{70+i}, 31")
        A(f"  s_lshr_b32 s{70+i}, s{70+i}, 5")
        A(f"  s_max_u32 s{70+i}, s{70+i}, 1")
    A("  s_mov_b32 s48, s70")
    for i in range(1, 8):
        A(f"  s_lshl_b32 s61, s{70+i}, {4*i}")
        A("  s_or_b32 s48, s48, s61")
    A("  s_lshl_b32 s61, s79, 4")
    A("  s_or_b32 s49, s78, s61")
    A(f"  v_lshlrev_b32 v{V_RC}, 4, v2")
    A(f"  v_lshlrev_b32 v{V_G32}, 5, v3")
    A("  s_lshl_b32 s44, s28, 9")
    A(f"  s_add_u32 s44, s44, {KB_EL}")
    A("  s_mov_b32 s64, 0")
    A("  s_mov_b32 s53, s70")
    for w in range(1, 4):
        A(f"  s_cmp_eq_u32 s28, {w}")
        A(f"  s_cselect_b32 s53, s{70+w}, s53")
    A("  s_mov_b32 s52, 1")
    issue_a()
    A("  s_waitcnt lgkmcnt(0)")
    issue_b(0)
    A("  v_min_u32 v6, 4, v1")
    A("  v_lshl_add_u32 v8, v6, 2, s28")
    A("  s_mov_b32 s58, 5")
    A("  v_cmp_le_u32 vcc, 10, v8")
    A("  v_subrev_u32 v9, 10, v8")
    A("  v_mov_b32 v10, 0")
    A("  v_mov_b32 v11, 1")
    A("  v_cndmask_b32 v8, v8, v9, vcc")
    A("  v_cndmask_b32 v10, v10, v11, vcc")
    A("  v_lshlrev_b32 v6, 2, v8")
    A("  v_mov_b32 v12, s48")
    A("  v_mov_b32 v13, s49")
    A("  v_lshrrev_b64 v[12:13], v6, v[12:13]")
    A("  v_and_b32 v12, 15, v12")
    A("  v_lshlrev_b32 v13, 18, v12")
    A(f"  v_lshlrev_b32 v{V_TE}, 9, v8")
    A(f"  v_add_u32 v{V_TE}, {KB_EL}, v{V_TE}")
    A(f"  v_or_b32 v{V_TE}, v{V_TE}, v13")
    A(f"  v_lshl_or_b32 v{V_TE}, v10, 22, v{V_TE}")
    A(f"  v_mul_u32_u24 v{V_TP}, {PG}, v8")
    A(f"  v_add_u32 v{V_TP}, {KB_P}, v{V_TP}")
    A(f"  v_or_b32 v{V_TP}, v{V_TP}, v13")
    A(f"  v_mul_u32_u24 v{V_TA}, {4*A2S}, v8")
    A(f"  v_lshl_add_u32 v{V_TA}, v10, 8, v{V_TA}")
    A(f"  v_lshl_or_b32 v{V_TA}, v10, 20, v{V_TA}")
    A("  v_cmp_gt_u32 vcc, s58, v1")
    A(f"  v_mov_b32 v6, {KB_DUMMY | (1 << 18)}")
    A(f"  v_mov_b32 v7, {KB_P | (1 << 18)}")
    A(f"  v_cndmask_b32 v{V_TE}, v6, v{V_TE}, vcc")
    A(f"  v_cndmask_b32 v{V_TP}, v7, v{V_TP}, vcc")
    A("  s_nop 1")
    for st in range(1, DPRE):
        issue_a()
        A("  s_waitcnt lgkmcnt(0)")
        issue_b(st)
    A(f"  v_mul_u32_u24 v{V_PL}, {PS}, v2")
    A(f"  v_lshl_add_u32 v{V_PL}, v3, 4, v{V_PL}")
    A(f"  v_mul_u32_u24 v{V_A2L}, {A2S}, v3")
    A(f"  v_add_u32 v{V_A2L}, v{V_A2L}, v{V_RC}")
    A(f"  v_mov_b32 v{V_ONE}, 1")
    A("  s_mov_b32 s60, 0x3f803f80")
    for i in range(4):
        A(f"  v_mov_b32 v{ONES+i}, s60")
    STAMP(3)
    if DPRE < D:
        lds_spin("KB_SDW", KB_SDF, 4, 6, 7)
    for st in range(DPRE, D):
        issue_a()
        A("  s_waitcnt lgkmcnt(0)")
        issue_b(st)
    issue_a()
    A("  s_mov_b32 s54, 0")
    cons_next_item()
    A("  s_mov_b32 s45, s42")
    A("  s_mov_b32 s41, 1")
    A("  s_mov_b32 s65, 0")
    lds_spin("KB_GSW", KB_GS, 4, 6, 7)
    A(f"  v_add_u32 v{V_TMP2}, s43, v{V_PL}")
    A(f"  ds_read_b128 {vr(PF,4)}, v{V_TMP2}")
    STAMP(4)
    if os.environ.get("SECT") == "1":
        for i in range(6):
            A(f"  s_mov_b32 s{88+i}, 0")
        A("  s_memtime s[98:99]")
        A("  s_waitcnt lgkmcnt(0)")
        A("  s_mov_b32 s97, s98")
    if "b" in os.environ.get("PRIO", "ab"):
        A("  s_setprio 2")
    A("KB_LOOP:")
    for st in range(D):
        pf = PF if (st & 1) == 0 else PF2
        pfn = PF2 if (st & 1) == 0 else PF
        A("  s_sub_u32 s55, s55, 1")
        A("  s_add_u32 s43, s43, 64")
        A("  s_mov_b32 s40, 0")
        A("  s_cmp_eq_u32 s55, 0")
        A(f"  s_cbranch_scc1 KB_CNO{st}")
        def cn():
            cons_next_item()
            A("  s_mov_b32 s40, 1")
        ool(f"KB_CNO{st}", f"KB_CN{st}", cn)
        A(f"KB_CN{st}:")
        SEC(0)
        A(f"  s_waitcnt vmcnt({8*(D-1)}) lgkmcnt(0)")
        SEC(1)
        A(f"  v_add_u32 v{V_TMP2}, s43, v{V_PL}")
        A(f"  ds_read_b128 {vr(pfn,4)}, v{V_TMP2}")
        signal_pending(st)
        A("  s_cmp_lg_u32 s41, 0")
        A(f"  s_cbranch_scc1 KB_CF{st}")
        def cf(st=st, pf=pf):
            consume(st, pf, True)
            for i in range(2):
                A(f"  v_mad_u32_u16 v{AD+i}, v{ENT+i}, s32, v{V_RC}")
            consume_tail(pf, True)
        ool(f"KB_CF{st}", f"KB_CC{st}", cf)
        consume(st, pf, False)
        for i in range(2):
            A(f"  v_mad_u32_u16 v{AD+i}, v{ENT+i}, s32, v{V_RC}")
        consume_tail(pf, False)
        A(f"KB_CC{st}:")
        SEC(2)
        for i in range(2, 8):
            A(f"  v_mad_u32_u16 v{AD+i}, v{ENT+i}, s32, v{V_RC}")
        for i in range(8):
            A(f"  buffer_load_dwordx4 {vr(RB+32*st+4*i,4)}, v{AD+i}, s[16:19], s64 offen")
        SEC(3)
        issue_a()
        SEC(4)
        A("  s_mov_b32 s41, s40")
        A("  s_cmp_lg_u32 s40, 0")
        A(f"  s_cbranch_scc1 KB_FIN{st}")
        def fin():
            finalize()
            A("  s_mov_b32 s45, s42")
            A("  s_cmp_ge_u32 s54, 6")
            A("  s_cbranch_scc1 KB_GEND")
        ool(f"KB_FIN{st}", f"KB_NOFIN{st}", fin)
        A(f"KB_NOFIN{st}:")
        SEC(5)
    A("  s_branch KB_LOOP")
    A("KB_GEND:")
    A("  s_waitcnt lgkmcnt(0)")
    signal_pending("E")
    A("KB_GDONE:")
    STAMP(5); RSTAMP(15); STAMP_OUT(14, 28, 1 << 20)
    A("  s_endpgm")
    emit_ool()
    A("KB_MS:")
    if "a" in os.environ.get("PRIO", "ab"):
        A("  s_setprio 3")
    A("  v_subrev_u32 v38, 256, v0")
    A("  v_lshlrev_b32 v5, 2, v38")
    A(f"  v_add_u32 v5, {KB_EL}, v5")
    for rd in range(5):
        A(f"  ds_read_b32 v{8+rd}, v5 offset:{1024*rd}")
    A("  s_waitcnt lgkmcnt(0)")
    A("  v_readfirstlane_b32 s51, v28")
    A("  s_cmp_lg_u32 s51, 0")
    A("  s_cbranch_scc1 KB_FALLBACK")
    OFFR = [13, 14, 15, 36, 37]
    DDR = 200
    for rd in range(5):
        A(f"  v_cmp_ne_u32 s[{36+2*rd}:{37+2*rd}], -1, v{8+rd}")
        A(f"  v_and_b32 v7, 0xffff, v{8+rd}")
        A(f"  v_lshlrev_b32 v{OFFR[rd]}, 4, v7")
    for rd in range(5):
        A(f"  s_mov_b64 exec, s[{36+2*rd}:{37+2*rd}]")
        A(f"  global_load_dwordx4 {vr(16+4*rd,4)}, v{OFFR[rd]}, s[26:27] sc1")
    A("  s_mov_b64 exec, -1")
    for rd in range(5):
        A(f"  v_lshrrev_b32 v7, 16, v{8+rd}")
        A(f"  v_lshlrev_b32 v7, 5, v7")
        A(f"  v_add_u32 v7, {KB_SD+16}, v7")
        A(f"  s_mov_b64 exec, s[{36+2*rd}:{37+2*rd}]")
        A(f"  ds_read_b128 {vr(DDR+4*rd,4)}, v7")
        A("  s_mov_b64 exec, -1")
    A("  v_lshlrev_b32 v5, 4, v1")
    A("  v_add_u32 v6, 0x10000, v5")
    for i in range(WEARLY):
        wload(i, 5, 6)
    A("  s_mov_b32 s49, 0")
    A(f"  s_waitcnt vmcnt({4*WEARLY})")
    A("  s_branch KB_SCHK")
    A("KB_SRETRY:")
    for rd in range(5):
        A(f"  s_mov_b64 exec, s[{36+2*rd}:{37+2*rd}]")
        A(f"  global_load_dwordx4 {vr(16+4*rd,4)}, v{OFFR[rd]}, s[26:27] sc1")
    A("  s_mov_b64 exec, -1")
    A("  s_waitcnt vmcnt(0)")
    A("KB_SCHK:")
    A("  s_mov_b64 s[46:47], 0")
    for rd in range(5):
        A(f"  s_mov_b64 exec, s[{36+2*rd}:{37+2*rd}]")
        for h in range(4):
            A(f"  v_cmp_eq_u32 vcc, -1, v{16+4*rd+h}")
            A("  s_or_b64 s[46:47], s[46:47], vcc")
    A("  s_mov_b64 exec, -1")
    A("  s_cmp_eq_u64 s[46:47], 0")
    A("  s_cbranch_scc1 KB_SOK")
    A("  s_add_u32 s49, s49, 1")
    A("  s_cmp_ge_u32 s49, 0x40000")
    A("  s_cbranch_scc1 KB_SOK")
    A("  s_sleep 2")
    A("  s_branch KB_SRETRY")
    A("KB_SOK:")
    if DIAG:
        A("  s_mov_b32 s90, s49")
    lds_signal(KB_SDF, 6, 7)
    STAMP(3)
    A("  s_mov_b32 s60, 0x3e4ccccd")
    for rd in range(5):
        S = 16 + 4 * rd
        Dd = DDR + 4 * rd
        A(f"  s_mov_b64 exec, s[{36+2*rd}:{37+2*rd}]")
        for h in range(4):
            A(f"  v_add_f32 v{S+h}, v{S+h}, v{Dd+h}")
        for h in range(4):
            A(f"  v_mul_f32 v{Dd+h}, s60, v{S+h}")
        for h in range(4):
            A(f"  v_max_f32 v{S+h}, v{S+h}, v{Dd+h}")
        for h in range(4):
            A(f"  v_exp_f32 v{S+h}, v{S+h}")
        A(f"  v_add_u32 v6, {256*rd}, v38")
        A("  v_lshrrev_b32 v7, 7, v6")
        A(f"  v_mul_u32_u24 v7, {PG}, v7")
        A("  v_and_b32 v6, 127, v6")
        A("  v_lshl_add_u32 v7, v6, 1, v7")
        A(f"  v_bfe_u32 v6, v{8+rd}, 16, 2")
        A(f"  v_mul_u32_u24 v6, {4*PS}, v6")
        A("  v_add_u32 v7, v7, v6")
        A(f"  v_add_u32 v7, {KB_P}, v7")
        A(f"  v_cvt_pk_bf16_f32 v{Dd}, v{S}, v{S+1}")
        A(f"  v_cvt_pk_bf16_f32 v{Dd+1}, v{S+2}, v{S+3}")
        A(f"  ds_write_b16 v7, v{Dd}")
        A(f"  ds_write_b16_d16_hi v7, v{Dd} offset:{PS}")
        A(f"  ds_write_b16 v7, v{Dd+1} offset:{2*PS}")
        A(f"  ds_write_b16_d16_hi v7, v{Dd+1} offset:{3*PS}")
    A("  s_mov_b64 exec, -1")
    lds_signal(KB_GS, 6, 7)
    if "a" in os.environ.get("PRIO", "ab"):
        A("  s_setprio 0")
    SPF = os.environ.get("SPF", "0")
    if SPF == "2":
        spf_code()
    gemm_setup()
    for i in range(WEARLY, RW):
        wload(i)
    if SPF == "1":
        spf_code()
    A("  s_branch KB_MW2")
    A("KB_FALLBACK:")
    gen_fallback()
    A(f"  v_mov_b32 v7, {KB_DONE}")
    A("  v_mov_b32 v8, 10")
    A("  v_mov_b32 v9, 10")
    A("  ds_write_b64 v7, v[8:9]")
    A("  s_waitcnt vmcnt(0) lgkmcnt(0)")
    A("  s_barrier")
    A("  s_cmp_lt_u32 s28, 4")
    A("  s_cbranch_scc1 KB_END")
    A("KB_MW:")
    gemm_setup()
    for i in range(RW):
        wload(i)
    A("KB_MW2:")
    STAMP(4)
    gen_gemm()
    STAMP(7); RSTAMP(15); STAMP_OUT(14, 28, 1 << 20)
    A("KB_END:")
    A("  s_endpgm")

def gen_fallback():
    A("  s_mov_b32 s62, 0")
    A("  v_lshlrev_b32 v48, 3, v1")
    A("  v_lshlrev_b32 v49, 2, v1")
    A("  s_mov_b32 s66, 0x3e4ccccd")
    A("  s_mov_b32 s67, 0xffff0000")
    A("KF_NODE:")
    A("  s_mul_i32 s63, s28, 5")
    A("  s_add_u32 s63, s63, s62")
    A("  s_add_u32 s64, s63, s29")
    for i in range(20):
        A(f"  v_mov_b32 v{16+i}, 0")
    A("  s_lshl_b32 s60, s63, 5")
    A(f"  s_add_u32 s60, s60, {KB_SD+16}")
    A("  v_mov_b32 v7, s60")
    A("  ds_read_b128 v[36:39], v7")
    A("  s_mov_b32 s65, 0")
    A("KF_CHUNK:")
    A("  v_add_u32 v50, s65, v49")
    A("  global_load_dword v40, v50, s[8:9]")
    A("  global_load_dword v41, v50, s[6:7]")
    A("  s_waitcnt vmcnt(0) lgkmcnt(0)")
    A("  v_cmp_eq_u32 s[68:69], s64, v40")
    A("  s_nop 1")
    A("KF_EDGE:")
    A("  s_cmp_eq_u64 s[68:69], 0")
    A("  s_cbranch_scc1 KF_NEXT")
    A("  s_ff1_i32_b64 s60, s[68:69]")
    A("  s_bitset0_b64 s[68:69], s60")
    A("  v_readlane_b32 s61, v41, s60")
    A("  s_nop 3")
    A("  s_lshl_b32 s60, s61, 9")
    A("  v_add_u32 v50, s60, v48")
    A("  buffer_load_dwordx2 v[42:43], v50, s[16:19], 0 offen")
    A("  s_lshl_b32 s60, s61, 4")
    A("  v_mov_b32 v51, s60")
    A("  s_mov_b32 s61, 0")
    A("KF_SRETRY:")
    A("  global_load_dwordx4 v[44:47], v51, s[26:27] sc1")
    A("  s_waitcnt vmcnt(0)")
    A("  s_mov_b64 s[42:43], 0")
    for h in range(4):
        A(f"  v_cmp_eq_u32 vcc, -1, v{44+h}")
        A("  s_or_b64 s[42:43], s[42:43], vcc")
    A("  s_cmp_eq_u64 s[42:43], 0")
    A("  s_cbranch_scc1 KF_SOK")
    A("  s_add_u32 s61, s61, 1")
    A("  s_cmp_ge_u32 s61, 0x40000")
    A("  s_cbranch_scc1 KF_SOK")
    A("  s_sleep 4")
    A("  s_branch KF_SRETRY")
    A("KF_SOK:")
    for h in range(4):
        A(f"  v_add_f32 v{44+h}, v{44+h}, v{36+h}")
        A(f"  v_mul_f32 v52, s66, v{44+h}")
        A(f"  v_max_f32 v{44+h}, v{44+h}, v52")
        A(f"  v_exp_f32 v{44+h}, v{44+h}")
    A("  s_nop 0")
    A("  v_cvt_pk_bf16_f32 v52, v44, v45")
    A("  v_cvt_pk_bf16_f32 v53, v46, v47")
    A("  v_lshlrev_b32 v44, 16, v52")
    A("  v_and_b32 v45, s67, v52")
    A("  v_lshlrev_b32 v46, 16, v53")
    A("  v_and_b32 v47, s67, v53")
    A("  v_lshlrev_b32 v52, 16, v42")
    A("  v_and_b32 v53, s67, v42")
    A("  v_lshlrev_b32 v54, 16, v43")
    A("  v_and_b32 v55, s67, v43")
    for h in range(4):
        A(f"  v_add_f32 v{32+h}, v{32+h}, v{44+h}")
        for f in range(4):
            A(f"  v_fma_f32 v{16+4*h+f}, v{44+h}, v{52+f}, v{16+4*h+f}")
    A("  s_branch KF_EDGE")
    A("KF_NEXT:")
    A("  s_add_u32 s65, s65, 256")
    A(f"  s_cmp_lt_u32 s65, {E*4}")
    A("  s_cbranch_scc1 KF_CHUNK")
    A("  s_mov_b32 s61, 0x3089705f")
    A(f"  s_mul_i32 s60, s63, {A2S}")
    A("  v_add_u32 v50, s60, v48")
    for h in range(4):
        A(f"  v_add_f32 v{32+h}, s61, v{32+h}")
        A(f"  v_rcp_f32 v{32+h}, v{32+h}")
        A("  s_nop 0")
        A(f"  v_mul_f32 v{32+h}, 0.25, v{32+h}")
        for f in range(4):
            A(f"  v_mul_f32 v{16+4*h+f}, v{16+4*h+f}, v{32+h}")
        A(f"  v_cvt_pk_bf16_f32 v52, v{16+4*h}, v{17+4*h}")
        A(f"  v_cvt_pk_bf16_f32 v53, v{18+4*h}, v{19+4*h}")
        A(f"  ds_write_b64 v50, v[52:53] offset:{h*512}")
    A("  s_add_u32 s62, s62, 1")
    A("  s_cmp_lt_u32 s62, 5")
    A("  s_cbranch_scc1 KF_NODE")

RW = 10
WR = 40
AF = 200
GACC = 224 - 0
def gacc(mt, nt):
    i = mt * 4 + nt
    if i < 8:
        return 224 + 4 * i
    return 24 + 4 * (i - 8)
VW0 = 4
VW1 = 5
VA0 = 6
VA1 = 7
VAB = 8
VAB = 13

VWA = [4, 5, 6, 7]
VWB = [8, 9, 10, 11]
VAH = [12, 13, 14, 15]
VAH2 = [16, 17, 18, 19]
VPO = 20
VPO2 = 21
def gemm_setup():
    A("  s_and_b32 s66, s2, 3")
    for hh in range(4):
        A(f"  s_add_u32 s60, s66, {hh}")
        A("  s_and_b32 s60, s60, 3")
        A(f"  s_lshl_b32 s{36+2*hh}, s60, 14")
        A(f"  s_add_u32 s{37+2*hh}, s{36+2*hh}, 8192")
        A("  s_lshl_b32 s60, s60, 9")
        if hh == 0:
            A(f"  v_mul_u32_u24 v{VPO}, {A2S}, v2")
            A(f"  v_lshl_add_u32 v{VPO}, v3, 4, v{VPO}")
        A(f"  v_add_u32 v{VAH[hh]}, s60, v{VPO}")
        A(f"  v_add_u32 v{VAH2[hh]}, {32*A2S}, v{VAH[hh]}")
    A(f"  v_lshlrev_b32 v{VWA[0]}, 4, v1")
    for q in range(1, 4):
        A(f"  v_add_u32 v{VWA[q]}, {2048*q}, v{VWA[0]}")
    for q in range(4):
        A(f"  v_add_u32 v{VWB[q]}, 0x10000, v{VWA[q]}")

def kdec(i):
    half = i >> 4; t = i & 15
    return half, t >> 2, t & 3

def wload(i, a0=None, a1=None):
    half, hh, q = kdec(i)
    slot = i % RW
    b = WR + 16 * slot
    so = f"s{36+2*hh+half}"
    A(f"  buffer_load_dwordx4 {vr(b,4)}, v{VWA[q]}, s[20:23], {so} offen")
    A(f"  buffer_load_dwordx4 {vr(b+4,4)}, v{VWA[q]}, s[20:23], {so} offen offset:1024")
    A(f"  buffer_load_dwordx4 {vr(b+8,4)}, v{VWB[q]}, s[20:23], {so} offen")
    A(f"  buffer_load_dwordx4 {vr(b+12,4)}, v{VWB[q]}, s[20:23], {so} offen offset:1024")

def aload(i):
    half, hh, q = kdec(i)
    b = AF + 12 * (i & 1)
    o = (4 * half + q) * 64
    A(f"  ds_read_b128 {vr(b,4)}, v{VAH[hh]} offset:{o}")
    A(f"  ds_read_b128 {vr(b+4,4)}, v{VAH[hh]} offset:{o+16*A2S}")
    A(f"  ds_read_b128 {vr(b+8,4)}, v{VAH2[hh]} offset:{o}")

VA0 = 22
VA1 = 23
def poll(half):
    A(f"  v_mov_b32 v{VA0}, {KB_DONE + 4*half}")
    A(f"KB_POLL{half}:")
    A(f"  ds_read_b32 v{VA1}, v{VA0}")
    A("  s_waitcnt lgkmcnt(0)")
    A(f"  v_readfirstlane_b32 s60, v{VA1}")
    A("  s_cmp_ge_u32 s60, 10")
    A(f"  s_cbranch_scc1 KB_POLLD{half}")
    A("  s_sleep 2")
    A(f"  s_branch KB_POLL{half}")
    A(f"KB_POLLD{half}:")

def gen_gemm():
    for i in range(32):
        if (i & 15) == 0:
            poll(i >> 4)
            if i == 16: STAMP(6)
            else: STAMP(5)
            aload(i)
        nxt = (i + 1) < 32 and ((i + 1) & 15) != 0
        if nxt:
            aload(i + 1)
        rem = min(RW - 1, 31 - i)
        A(f"  s_waitcnt vmcnt({4*rem})")
        A(f"  s_waitcnt lgkmcnt({3 if nxt else 0})")
        slot = i % RW
        b = AF + 12 * (i & 1)
        for mt in range(3):
            for nt in range(4):
                a = gacc(mt, nt)
                c = "0" if i == 0 else vr(a, 4)
                A(f"  v_mfma_f32_16x16x32_bf16 {vr(a,4)}, {vr(WR+16*slot+4*nt,4)}, {vr(b+4*mt,4)}, {c}")
        if i + RW < 32:
            wload(i + RW)
    A("  v_add_u32 v6, s29, v2")
    A("  v_lshlrev_b32 v6, 9, v6")
    A("  v_lshl_add_u32 v6, v3, 4, v6")
    A("  s_and_b32 s60, s28, 3")
    A("  s_lshl_b32 s60, s60, 7")
    A("  v_add_u32 v6, s60, v6")
    A("  v_add_u32 v7, 0x2000, v6")
    A("  v_add_u32 v8, 0x4000, v6")
    A("  v_cmp_gt_u32 vcc, 8, v2")
    A("  s_nop 4")
    for mt in range(3):
        if mt == 2:
            A("  s_and_saveexec_b64 s[34:35], vcc")
        for p in range(2):
            a0 = gacc(mt, 2 * p); a1 = gacc(mt, 2 * p + 1)
            o = 40 + 8 * mt + 4 * p
            A(f"  v_cvt_pk_bf16_f32 v{o}, v{a0}, v{a0+1}")
            A(f"  v_cvt_pk_bf16_f32 v{o+1}, v{a0+2}, v{a0+3}")
            A(f"  v_cvt_pk_bf16_f32 v{o+2}, v{a1}, v{a1+1}")
            A(f"  v_cvt_pk_bf16_f32 v{o+3}, v{a1+2}, v{a1+3}")
            A(f"  global_store_dwordx4 v{6+mt}, {vr(o,4)}, s[12:13] offset:{64*p}")
    A("  s_mov_b64 exec, -1")

def desc(name, vgpr, sgpr):
    acc = (vgpr + 3) // 4 * 4
    A(f".amdhsa_kernel {name}")
    A(f"  .amdhsa_next_free_vgpr {vgpr}")
    A(f"  .amdhsa_next_free_sgpr {sgpr}")
    A(f"  .amdhsa_accum_offset {acc}")
    A("  .amdhsa_group_segment_fixed_size 0")
    A("  .amdhsa_kernarg_size 72")
    A("  .amdhsa_user_sgpr_count 2")
    A("  .amdhsa_user_sgpr_kernarg_segment_ptr 1")
    A("  .amdhsa_system_sgpr_workgroup_id_x 1")
    A(".end_amdhsa_kernel")

def main():
    A(HEADER.format(lds_a=KA_LDS, lds_b=KB_LDS).rstrip("\n"))
    gen_prep()
    gen_main()
    A('.section .rodata,"a"')
    A(".p2align 6")
    desc("gat_prep_kernel", 104, 102)
    A(".p2align 6")
    desc("gat_main_kernel", 256, 102)
    txt = "\n".join(x for x in out if x is not None) + "\n"
    path = sys.argv[1] if len(sys.argv) > 1 else "standalone__graph_attention_gat__graph.s"
    open(path, "w").write(txt)

main()
```

```python
import sys, os

N = 10000
E = 160000
CELL_BYTES = 16000
STAB_OFF = 4194304
WF_OFF = 5242880
BF_OFF = 6291456
XBYTES = N * 512

DIAG = os.environ.get("DIAG") == "1"
STAMP_OFF = 8 << 20
out = []
def A(s=""):
    out.append(s)
def STAMP(i):
    if not DIAG: return
    A("  s_memtime s[98:99]")
    A("  s_waitcnt lgkmcnt(0)")
    A(f"  s_mov_b32 s{82+i}, s98")
def RSTAMP(i):
    if not DIAG: return
    A("  s_memrealtime s[98:99]")
    A("  s_waitcnt lgkmcnt(0)")
    A(f"  s_mov_b32 s{82+i}, s98")
def STAMP_OUT(wsreg, wavereg, koff, v0=4, v1=5):
    if not DIAG: return
    A("  s_mov_b64 exec, 1")
    A("  s_lshl_b32 s98, s2, 4")
    A(f"  s_add_u32 s98, s98, s{wavereg}")
    A("  s_lshl_b32 s98, s98, 6")
    A(f"  s_add_u32 s98, s98, {STAMP_OFF + koff}")
    A(f"  v_mov_b32 v{v0}, s98")
    for i in range(16):
        A(f"  v_mov_b32 v{v1}, s{82+i}")
        A(f"  global_store_dword v{v0}, v{v1}, s[{wsreg}:{wsreg+1}] offset:{4*i}")
        A("  s_nop 1")

def vr(b, n):
    return f"v[{b}:{b+n-1}]"

HEADER = """; GAT: out[n] = mean_h sum_e alpha[e,h] * (x[src e] @ W_h)  computed as  (sum_e alpha x[src e]) @ W
; @launch kernel=gat_prep_kernel grid=(256,1,1) block=(640,1,1) lds={lds_a}
; @launch kernel=gat_main_kernel grid=(250,1,1) block=(768,1,1) lds={lds_b}
.amdgcn_target "amdgcn-amd-amdhsa--gfx950"
.text
"""

KA_CELLS = 0
KA_CNT = 16000
KA_LDS = 17024

K0SC = os.environ.get("K0SC", "")
def gen_prep():
    A(".globl gat_prep_kernel")
    A(".p2align 8")
    A(".type gat_prep_kernel,@function")
    A("gat_prep_kernel:")
    A("  s_cmp_ge_u32 s2, 256")
    A("  s_cbranch_scc1 KA_END")
    RSTAMP(14); STAMP(0)
    A("  s_load_dwordx8 s[4:11], s[0:1], 0")
    A("  s_load_dwordx4 s[12:15], s[0:1], 32")
    A("  s_load_dwordx2 s[16:17], s[0:1], 64")
    A("  v_lshrrev_b32 v6, 6, v0")
    A("  v_and_b32 v1, 63, v0")
    A("  v_and_b32 v2, 15, v1")
    A("  v_lshrrev_b32 v3, 4, v1")
    A("  v_readfirstlane_b32 s24, v6")
    A("  s_lshr_b32 s25, s2, 4")
    A("  s_and_b32 s26, s2, 15")
    A("  v_mov_b32 v4, 0")
    A("  v_mov_b32 v5, 0")
    A("  s_waitcnt lgkmcnt(0)")
    A("  s_cmp_ge_u32 s2, 250")
    A("  s_cbranch_scc1 KA_NOEDGE")
    A("  s_mul_i32 s27, s2, 2560")
    A("  v_lshl_add_u32 v6, v0, 2, s27")
    A("  global_load_dword v4, v6, s[8:9]")
    A("  global_load_dword v5, v6, s[6:7]")
    A("  s_mul_i32 s27, s2, 640")
    A(f"  s_add_u32 s27, s27, {STAB_OFF}")
    A("  v_lshl_add_u32 v6, v0, 4, s27")
    for i in range(4):
        A(f"  v_mov_b32 v{80+i}, -1")
    A("  v_cmp_gt_u32 vcc, 40, v0")
    A("  s_and_saveexec_b64 s[32:33], vcc")
    A("  s_cbranch_execz KA_NORST")
    A("  global_store_dwordx4 v6, v[80:83], s[16:17]")
    A("KA_NORST:")
    A("  s_mov_b64 exec, s[32:33]")
    A("KA_NOEDGE:")
    A("  s_mov_b32 s36, 0")
    A("  s_cmp_ge_u32 s24, 8")
    A("  s_cbranch_scc1 KA_SHUF_LOAD")
    A("  s_cmp_lg_u32 s24, 0")
    A("  s_cbranch_scc1 KA_INIT")
    A("  s_cmp_ge_u32 s2, 64")
    A("  s_cbranch_scc1 KA_INIT")
    A("  s_mov_b32 s36, 1")
    A("  v_mov_b32 v72, s12")
    A("  v_mov_b32 v73, s13")
    A("  v_mov_b32 v74, s14")
    A("  v_mov_b32 v75, s15")
    A("  v_cmp_eq_u32 vcc, 1, v2")
    A("  s_lshl_b32 s27, s25, 9")
    A("  v_lshlrev_b32 v76, 4, v3")
    A("  v_add_u32 v76, s27, v76")
    A("  v_cndmask_b32 v72, v72, v74, vcc")
    A("  v_cndmask_b32 v73, v73, v75, vcc")
    A("  v_add_co_u32 v72, vcc, v72, v76")
    A("  s_nop 1")
    A("  v_addc_co_u32 v73, vcc, 0, v73, vcc")
    for i in range(32):
        A(f"  v_mov_b32 v{40+i}, 0")
    A("  v_cmp_gt_u32 vcc, 2, v2")
    A("  s_and_saveexec_b64 s[32:33], vcc")
    for kk in range(8):
        A(f"  global_load_dwordx4 {vr(40+4*kk,4)}, v[72:73], off offset:{kk*64}")
    A("  s_mov_b64 exec, s[32:33]")
    A("  s_lshl_b32 s27, s2, 13")
    A("  v_lshlrev_b32 v76, 9, v2")
    A("  v_lshl_add_u32 v76, v3, 4, v76")
    A("  v_add_u32 v76, s27, v76")
    for kk in range(8):
        A(f"  global_load_dwordx4 {vr(8+4*kk,4)}, v76, s[10:11] offset:{kk*64}")
    A("  s_branch KA_INIT")
    A("KA_SHUF_LOAD:")
    A("  s_mov_b32 s36, 2")
    A("  s_lshr_b32 s27, s2, 5")
    A("  s_lshl_b32 s27, s27, 6")
    A("  s_and_b32 s34, s2, 31")
    A("  s_lshl_b32 s34, s34, 14")
    A("  s_add_u32 s27, s27, s34")
    A("  s_sub_u32 s34, s24, 8")
    A("  s_lshl_b32 s34, s34, 3")
    A("  s_add_u32 s27, s27, s34")
    A("  v_lshrrev_b32 v76, 2, v2")
    A("  v_lshlrev_b32 v76, 4, v76")
    A("  v_and_b32 v77, 3, v2")
    A("  v_lshl_add_u32 v76, v77, 1, v76")
    A("  v_lshl_add_u32 v76, v3, 12, v76")
    A("  v_add_u32 v76, s27, v76")
    for j in range(8):
        A(f"  global_load_ushort v{44+j}, v76, s[10:11] offset:{j*512}")
    A("KA_INIT:")
    A("  s_min_u32 s27, s2, 249")
    A("  s_mul_i32 s27, s27, 20480")
    A("  s_lshl_b32 s34, s24, 11")
    A("  s_add_u32 s27, s27, s34")
    A("  v_lshl_add_u32 v88, v1, 4, s27")
    A("  global_load_dwordx4 v[96:99], v88, s[4:5]")
    A("  global_load_dwordx4 v[100:103], v88, s[4:5] offset:1024")
    for i in range(4):
        A(f"  v_mov_b32 v{80+i}, -1")
        A(f"  v_mov_b32 v{84+i}, 0")
    A("  v_lshlrev_b32 v79, 4, v0")
    A(f"  ds_write_b128 v79, v[80:83] offset:{KA_CELLS}")
    A("  v_cmp_gt_u32 vcc, 360, v0")
    A("  s_and_saveexec_b64 s[32:33], vcc")
    A(f"  ds_write_b128 v79, v[80:83] offset:{KA_CELLS+10240}")
    A("  s_mov_b64 exec, s[32:33]")
    A("  v_cmp_gt_u32 vcc, 64, v0")
    A("  s_and_saveexec_b64 s[32:33], vcc")
    A(f"  ds_write_b128 v79, v[84:87] offset:{KA_CNT}")
    A("  s_mov_b64 exec, s[32:33]")
    A("  s_waitcnt lgkmcnt(0)")
    A("  s_barrier")
    STAMP(1)
    A("  s_cmp_ge_u32 s2, 250")
    A("  s_cbranch_scc1 KA_NOPART")
    A("  s_cmp_eq_u32 s36, 1")
    A("  s_cbranch_scc1 KA_PW1")
    A("  s_cmp_eq_u32 s36, 2")
    A("  s_cbranch_scc1 KA_PW2")
    A("  s_waitcnt vmcnt(2)")
    A("  s_branch KA_PW3")
    A("KA_PW1:")
    A("  s_waitcnt vmcnt(18)")
    A("  s_branch KA_PW3")
    A("KA_PW2:")
    A("  s_waitcnt vmcnt(10)")
    A("KA_PW3:")
    A("  v_mul_u32_u24 v6, 52429, v4")
    A("  v_lshrrev_b32 v6, 21, v6")
    A("  v_mul_u32_u24 v7, 40, v6")
    A("  v_sub_u32 v7, v4, v7")
    A("  v_lshl_or_b32 v7, v7, 16, v5")
    A("  v_lshlrev_b32 v88, 2, v6")
    A("  v_mov_b32 v89, 1")
    A(f"  ds_add_rtn_u32 v90, v88, v89 offset:{KA_CNT}")
    A("  v_mov_b32 v91, 0xfffffffe")
    A("  v_lshlrev_b32 v88, 6, v6")
    A("  s_waitcnt lgkmcnt(0)")
    A("  v_cmp_gt_u32 vcc, 15, v90")
    A("  v_min_u32 v90, 15, v90")
    A("  v_lshl_add_u32 v88, v90, 2, v88")
    A("  v_cndmask_b32 v7, v91, v7, vcc")
    A(f"  ds_write_b32 v88, v7 offset:{KA_CELLS}")
    A("KA_NOPART:")
    A("  s_waitcnt lgkmcnt(0)")
    A("  s_barrier")
    STAMP(2)
    A("  s_cmp_ge_u32 s2, 250")
    A("  s_cbranch_scc1 KA_NOCOPY")
    A(f"  ds_read_b128 v[80:83], v79 offset:{KA_CELLS}")
    A(f"  ds_read_b128 v[84:87], v79 offset:{KA_CELLS+10240}")
    A("  v_lshrrev_b32 v88, 2, v0")
    A(f"  v_mul_u32_u24 v88, {CELL_BYTES}, v88")
    A("  v_and_b32 v89, 3, v0")
    A("  v_lshl_add_u32 v88, v89, 4, v88")
    A("  s_lshl_b32 s27, s2, 6")
    A("  v_add_u32 v88, s27, v88")
    A(f"  v_add_u32 v89, {160*CELL_BYTES}, v88")
    A("  s_waitcnt lgkmcnt(0)")
    A("  global_store_dwordx4 v88, v[80:83], s[16:17]"+K0SC)
    A("  v_cmp_gt_u32 vcc, 360, v0")
    A("  s_and_saveexec_b64 s[32:33], vcc")
    A("  s_cbranch_execz KA_CP2")
    A("  global_store_dwordx4 v89, v[84:87], s[16:17]"+K0SC)
    A("KA_CP2:")
    A("  s_mov_b64 exec, s[32:33]")
    A("KA_NOCOPY:")
    STAMP(3)
    A("  s_cmp_eq_u32 s36, 0")
    A("  s_cbranch_scc1 KA_FIN")
    A("  s_cmp_eq_u32 s36, 2")
    A("  s_cbranch_scc1 KA_SHUF_ST")
    A("  s_waitcnt vmcnt(0)")
    for kk in range(8):
        c = "0" if kk == 0 else "v[92:95]"
        A(f"  v_mfma_f32_16x16x32_bf16 v[92:95], {vr(8+4*kk,4)}, {vr(40+4*kk,4)}, {c}")
    A("  s_lshr_b32 s27, s26, 1")
    A("  s_lshl_b32 s27, s27, 10")
    A("  s_and_b32 s34, s26, 1")
    A("  s_lshl_b32 s34, s34, 9")
    A("  s_add_u32 s27, s27, s34")
    A("  s_lshl_b32 s34, s25, 6")
    A("  s_add_u32 s27, s27, s34")
    A(f"  s_add_u32 s27, s27, {BF_OFF}")
    A("  v_lshrrev_b32 v88, 1, v3")
    A("  v_lshlrev_b32 v88, 8, v88")
    A("  v_lshl_add_u32 v88, v2, 5, v88")
    A("  v_and_b32 v89, 1, v3")
    A("  v_lshl_add_u32 v88, v89, 3, v88")
    A("  v_add_u32 v88, s27, v88")
    A("  s_mov_b32 s34, 0x3fb8aa3b")
    A("  s_mov_b32 s35, 0xffff0000")
    A("  v_cmp_gt_u32 vcc, 2, v2")
    A("  s_nop 1")
    b = 92
    for r in range(4):
        A(f"  v_mul_f32 v{b+r}, s34, v{b+r}")
    A(f"  v_cvt_pk_bf16_f32 v80, v{b}, v{b+1}")
    A(f"  v_cvt_pk_bf16_f32 v81, v{b+2}, v{b+3}")
    A("  v_lshlrev_b32 v82, 16, v80")
    A("  v_and_b32 v83, s35, v80")
    A("  v_lshlrev_b32 v84, 16, v81")
    A("  v_and_b32 v85, s35, v81")
    for r in range(4):
        A(f"  v_sub_f32 v{82+r}, v{b+r}, v{82+r}")
    A("  v_cvt_pk_bf16_f32 v82, v82, v83")
    A("  v_cvt_pk_bf16_f32 v83, v84, v85")
    A("  s_and_saveexec_b64 s[32:33], vcc")
    A("  global_store_dwordx2 v88, v[80:81], s[16:17]")
    A("  global_store_dwordx2 v88, v[82:83], s[16:17] offset:16")
    A("  s_mov_b64 exec, s[32:33]")
    A("  s_branch KA_FIN")
    A("KA_SHUF_ST:")
    A("  s_waitcnt vmcnt(0)")
    for t in range(4):
        A(f"  v_lshl_or_b32 v{40+t}, v{45+2*t}, 16, v{44+2*t}")
    A("  s_lshl_b32 s27, s2, 11")
    A(f"  s_add_u32 s27, s27, {WF_OFF - 512*16}")
    A("  v_lshl_add_u32 v88, v0, 4, s27")
    A("  global_store_dwordx4 v88, v[40:43], s[16:17]"+K0SC)
    A("KA_FIN:")
    L2W = int(os.environ.get("L2W", "0"))
    if L2W:
        A("  s_mov_b32 s40, s4")
        A("  s_and_b32 s41, s5, 0xffff")
        A(f"  s_mov_b32 s42, {XBYTES}")
        A("  s_mov_b32 s43, 0x20000")
        A("  s_lshr_b32 s27, s2, 3")
        A("  s_mul_i32 s27, s27, 160000")
        A("  s_mul_i32 s34, s24, 16000")
        A("  s_add_u32 s27, s27, s34")
        A("  v_lshl_add_u32 v88, v1, 4, s27")
        for i in range(L2W):
            A(f"  buffer_load_dwordx4 v[96:99], v88, s[40:43], 0 offen")
            A("  v_add_u32 v88, 0x400, v88")
    STAMP(4); RSTAMP(15); STAMP_OUT(16, 24, 0)
    A("KA_END:")
    A("  s_endpgm")

A2S = 2064
KB_A2 = 0
KB_P = 40 * A2S
PS = 272
PG = 16 * PS
KB_EL = KB_P + 10 * PG
KB_DUMMY = KB_EL + 5120
KB_SD = KB_DUMMY + 128
KB_CNT = KB_SD + 1536
KB_FLAG = KB_CNT + 48
KB_DONE = KB_CNT + 52
KB_LDS = KB_CNT + 64

D = 2
RB = 16
ACC = 80
DEN = 112
T0 = 116
PF = 132
PF2 = 136
ENT = 140
AD = 148
ONES = 156
V_RC = 160
V_G32 = 161
V_PL = 162
V_A2L = 163
V_TMP = 164
V_TMP2 = 165
V_ONE = 166
V_CTR = 167
KB_CTR = KB_CNT + 60

def decode_item(it, grp, hf):
    A(f"  s_cmp_ge_u32 s{it}, 10")
    A(f"  s_cselect_b32 s{hf}, 1, 0")
    A(f"  s_cselect_b32 s{grp}, 10, 0")
    A(f"  s_sub_u32 s{grp}, s{it}, s{grp}")

def nsteps_of(grp, out_reg):
    A(f"  s_lshl_b32 s46, s{grp}, 2")
    A("  s_lshr_b64 s[46:47], s[48:49], s46")
    A(f"  s_and_b32 s{out_reg}, s46, 15")

def issue_next_item():
    A("  s_mov_b64 exec, 1")
    A(f"  ds_add_rtn_u32 v{V_TMP}, v{V_CTR}, v{V_ONE}")
    A("  s_mov_b64 exec, -1")
    A("  s_waitcnt lgkmcnt(0)")
    A(f"  v_readfirstlane_b32 s60, v{V_TMP}")
    A("  s_add_u32 s60, s60, 8")
    A("  s_min_u32 s60, s60, 31")
    A("  s_cmp_ge_u32 s60, 20")
    A("  s_cselect_b32 s60, 31, s60")
    A("  s_mov_b32 s61, 0")
    A("  s_lshl_b64 s[46:47], s[60:61], s52")
    A("  s_or_b64 s[62:63], s[62:63], s[46:47]")
    A("  s_add_u32 s52, s52, 5")
    A("  s_min_u32 s52, s52, 55")
    decode_item(60, 61, 64)
    A("  s_lshl_b32 s64, s64, 8")
    nsteps_of(61, 53)
    A("  s_lshl_b32 s44, s61, 9")
    A(f"  s_add_u32 s44, s44, {KB_EL}")
    A("  s_cmp_eq_u32 s60, 31")
    A(f"  s_cselect_b32 s44, {KB_DUMMY}, s44")
    A("  s_cselect_b32 s53, 15, s53")
    A("  s_cselect_b32 s59, 0, 128")

OOL = []
def ool(label, back, fn):
    OOL.append((label, back, fn))
def emit_ool():
    for label, back, fn in OOL:
        A(f"{label}:")
        fn()
        A(f"  s_branch {back}")
    OOL.clear()

IA = [0]
def issue_a():
    n = IA[0]; IA[0] += 1
    A("  s_cmp_eq_u32 s53, 0")
    A(f"  s_cbranch_scc1 IAO_{n}")
    ool(f"IAO_{n}", f"IA_{n}", issue_next_item)
    A(f"IA_{n}:")
    A(f"  v_add_u32 v{V_TMP}, s44, v{V_G32}")
    A(f"  ds_read_b128 {vr(ENT,4)}, v{V_TMP}")
    A(f"  ds_read_b128 {vr(ENT+4,4)}, v{V_TMP} offset:16")
    A("  s_add_u32 s44, s44, s59")
    A("  s_sub_u32 s53, s53, 1")

def issue_b(st):
    for i in range(8):
        A(f"  v_mad_u32_u16 v{AD+i}, v{ENT+i}, s32, v{V_RC}")
    for i in range(8):
        A(f"  buffer_load_dwordx4 {vr(RB+32*st+4*i,4)}, v{AD+i}, s[16:19], s64 offen")

def perms(st, q, tb):
    R = lambda i: RB + 32 * st + 4 * i + q
    for t in range(4):
        A(f"  v_perm_b32 v{tb+t}, v{R(2*t+1)}, v{R(2*t)}, s30")
    for t in range(4):
        A(f"  v_perm_b32 v{tb+4+t}, v{R(2*t+1)}, v{R(2*t)}, s31")

def mf1(q, u, tb, pf, first):
    a = ACC + 4 * (2 * q + u)
    c = "0" if first else vr(a, 4)
    A(f"  v_mfma_f32_16x16x32_bf16 {vr(a,4)}, {vr(pf,4)}, {vr(tb+4*u,4)}, {c}")

def consume(st, pf, first):
    TA, TB = T0, T0 + 8
    R = lambda i, q: RB + 32 * st + 4 * i + q
    def P(q, tb, u):
        sel = "s30" if u == 0 else "s31"
        for t in range(4):
            A(f"  v_perm_b32 v{tb+4*u+t}, v{R(2*t+1,q)}, v{R(2*t,q)}, {sel}")
    c = "0" if first else vr(DEN, 4)
    P(0, TA, 0)
    A(f"  v_mfma_f32_16x16x32_bf16 {vr(DEN,4)}, {vr(pf,4)}, {vr(ONES,4)}, {c}")
    P(0, TA, 1)
    mf1(0, 0, TA, pf, first)
    P(1, TB, 0)
    mf1(0, 1, TA, pf, first)
    P(1, TB, 1)
    mf1(1, 0, TB, pf, first)
    P(2, TA, 0)
    mf1(1, 1, TB, pf, first)
    P(2, TA, 1)
    mf1(2, 0, TA, pf, first)
    P(3, TB, 0)
    mf1(2, 1, TA, pf, first)
    P(3, TB, 1)
    mf1(3, 0, TB, pf, first)

def consume_tail(pf, first):
    mf1(3, 1, T0 + 8, pf, first)

def finalize():
    A("  s_and_b32 s60, s45, 0xfffff")
    A(f"  v_add_u32 v{V_TMP2}, s60, v{V_A2L}")
    A("  s_mov_b32 s61, 0x3089705f")
    for r in range(4):
        A(f"  v_add_f32 v{DEN+r}, s61, v{DEN+r}")
    for r in range(4):
        A(f"  v_rcp_f32 v{DEN+r}, v{DEN+r}")
    A("  s_lshr_b32 s65, s45, 20")
    A("  s_lshl_b32 s65, s65, 2")
    A(f"  s_add_u32 s65, s65, {KB_DONE}")
    for r in range(4):
        A(f"  v_mul_f32 v{DEN+r}, 0.25, v{DEN+r}")
    for j in range(8):
        A(f"  v_pk_mul_f32 {vr(ACC+4*j,2)}, {vr(ACC+4*j,2)}, {vr(DEN,2)}")
        A(f"  v_pk_mul_f32 {vr(ACC+4*j+2,2)}, {vr(ACC+4*j+2,2)}, {vr(DEN+2,2)}")
    for r in range(4):
        tb = T0 + 4 * (r & 3)
        for t in range(4):
            A(f"  v_cvt_pk_bf16_f32 v{tb+t}, v{ACC+4*(2*t)+r}, v{ACC+4*(2*t+1)+r}")
        A(f"  ds_write_b128 v{V_TMP2}, {vr(tb,4)} offset:{r*512}")
    A(f"  v_mov_b32 v{V_TMP2}, s65")
    A("  s_mov_b32 s65, 0")
    A("  s_waitcnt lgkmcnt(0)")
    A("  s_mov_b64 exec, 1")
    A(f"  ds_add_u32 v{V_TMP2}, v{V_ONE}")
    A("  s_mov_b64 exec, -1")

def signal_pending(n):
    return
def signal_pending_old(n):
    def body():
        A(f"  v_mov_b32 v{V_TMP2}, s65")
        A("  s_mov_b64 exec, 1")
        A(f"  ds_add_u32 v{V_TMP2}, v{V_ONE}")
        A("  s_mov_b64 exec, -1")
        A("  s_mov_b32 s65, 0")
    A("  s_cmp_lg_u32 s65, 0")
    A(f"  s_cbranch_scc1 SPO_{n}")
    ool(f"SPO_{n}", f"SP_{n}", body)
    A(f"SP_{n}:")

def cons_next_item():
    A("  s_lshr_b64 s[46:47], s[62:63], s54")
    A("  s_and_b32 s56, s46, 31")
    A("  s_add_u32 s54, s54, 5")
    decode_item(56, 61, 60)
    nsteps_of(61, 55)
    A(f"  s_mul_i32 s43, s61, {PG}")
    A(f"  s_add_u32 s43, s43, {KB_P}")
    A(f"  s_mul_i32 s42, s61, {4*A2S}")
    A("  s_lshl_b32 s46, s60, 8")
    A("  s_add_u32 s42, s42, s46")
    A("  s_lshl_b32 s46, s60, 20")
    A("  s_or_b32 s42, s42, s46")
    A("  s_cmp_eq_u32 s56, 31")
    A(f"  s_cselect_b32 s43, {KB_P}, s43")

def lds_spin(name, addr, target, vtmp, vtmp2):
    A(f"  v_mov_b32 v{vtmp}, {addr}")
    A(f"{name}:")
    A(f"  ds_read_b32 v{vtmp2}, v{vtmp}")
    A("  s_waitcnt lgkmcnt(0)")
    A(f"  v_readfirstlane_b32 s60, v{vtmp2}")
    A(f"  s_cmp_ge_u32 s60, {target}")
    A(f"  s_cbranch_scc1 {name}_D")
    A("  s_sleep 1")
    A(f"  s_branch {name}")
    A(f"{name}_D:")

def lds_signal(addr, vtmp, vone):
    A(f"  v_mov_b32 v{vtmp}, {addr}")
    A(f"  v_mov_b32 v{vone}, 1")
    A("  s_waitcnt lgkmcnt(0)")
    A("  s_mov_b64 exec, 1")
    A(f"  ds_add_u32 v{vtmp}, v{vone}")
    A("  s_mov_b64 exec, -1")

DPRE = int(os.environ.get("DPRE", "1"))
WEARLY = int(os.environ.get("WEARLY", "0"))
KB_SDF = KB_CNT + 40
KB_GS = KB_CNT + 44
WPRE = int(os.environ.get("WPRE", "0"))

def spf_code():
    for rd in range(5):
        A(f"SPF_L{rd}:")
        A(f"  s_cmp_eq_u64 s[{36+2*rd}:{37+2*rd}], 0")
        A(f"  s_cbranch_scc1 SPF_D{rd}")
        A(f"  s_ff1_i32_b64 s60, s[{36+2*rd}:{37+2*rd}]")
        A(f"  s_bitset0_b64 s[{36+2*rd}:{37+2*rd}], s60")
        A(f"  v_readlane_b32 s61, v{8+rd}, s60")
        A("  s_and_b32 s61, s61, 0xffff")
        A("  s_lshl_b32 s61, s61, 9")
        A("  s_add_u32 s60, s61, 256")
        A("  s_add_u32 s61, s61, 384")
        A("  s_load_dword s46, s[4:5], s60")
        A("  s_load_dword s47, s[4:5], s61")
        A(f"  s_branch SPF_L{rd}")
        A(f"SPF_D{rd}:")
    A("  s_waitcnt lgkmcnt(0)")

def SEC(i):
    if os.environ.get("SECT") != "1": return
    A("  s_memtime s[98:99]")
    A("  s_waitcnt lgkmcnt(0)")
    A("  s_sub_u32 s99, s98, s97")
    A(f"  s_add_u32 s{88+i}, s{88+i}, s99")
    A("  s_mov_b32 s97, s98")

def gen_main():
    A(".globl gat_main_kernel")
    A(".p2align 8")
    A(".type gat_main_kernel,@function")
    A("gat_main_kernel:")
    A("  s_cmp_ge_u32 s2, 250")
    A("  s_cbranch_scc1 KB_END")
    RSTAMP(14); STAMP(0)
    A("  s_load_dwordx4 s[4:7], s[0:1], 0")
    A("  s_load_dwordx2 s[8:9], s[0:1], 16")
    A("  s_load_dwordx2 s[12:13], s[0:1], 48")
    A("  s_load_dwordx2 s[14:15], s[0:1], 64")
    A("  v_add_u32 v6, 512, v0")
    A("  v_subrev_u32 v7, 256, v0")
    A("  v_cmp_gt_u32 vcc, 256, v0")
    A("  s_nop 1")
    A("  v_cndmask_b32 v0, v7, v6, vcc")
    A("  v_lshrrev_b32 v6, 6, v0")
    A("  v_and_b32 v1, 63, v0")
    A("  v_and_b32 v2, 15, v1")
    A("  v_lshrrev_b32 v3, 4, v1")
    A("  v_readfirstlane_b32 s28, v6")
    A("  s_mul_i32 s29, s2, 40")
    A("  s_mov_b32 s30, 0x05040100")
    A("  s_mov_b32 s31, 0x07060302")
    A("  s_movk_i32 s32, 0x200")
    A("  s_mov_b32 s33, 0xfffffffe")
    A("  s_and_b32 s66, s2, 15")
    A("  v_lshlrev_b32 v4, 4, v0")
    for i in range(4):
        A(f"  v_mov_b32 v{12+i}, -1")
    A("  s_sub_u32 s50, s28, 8")
    A("  s_waitcnt lgkmcnt(0)")
    A("  s_mov_b32 s16, s4")
    A("  s_and_b32 s17, s5, 0xffff")
    A(f"  s_mov_b32 s18, {XBYTES}")
    A("  s_mov_b32 s19, 0x20000")
    A("  s_cmp_ge_u32 s50, 3")
    A("  s_cbranch_scc1 KB_CELLS")
    A("  s_lshl_b32 s60, s50, 4")
    A("  s_add_u32 s60, s60, s29")
    A("  v_add_u32 v6, s60, v2")
    A("  v_lshlrev_b32 v6, 9, v6")
    A("  v_lshl_add_u32 v6, v3, 4, v6")
    A(f"  s_add_u32 s60, s14, {BF_OFF}")
    A("  s_addc_u32 s61, s15, 0")
    A("  v_lshlrev_b32 v7, 4, v1")
    A("  v_add_u32 v5, 0x1000, v7")
    for kk in range(8):
        A(f"  buffer_load_dwordx4 {vr(64+4*kk,4)}, v6, s[16:19], 0 offen offset:{kk*64}")
        A(f"  global_load_dwordx4 {vr(96+4*kk,4)}, v{7 if kk<4 else 5}, s[60:61] offset:{(kk&3)*1024}")
    A("KB_CELLS:")
    A(f"  s_mul_i32 s60, s2, {CELL_BYTES}")
    A("  s_add_u32 s24, s14, s60")
    A("  s_addc_u32 s25, s15, 0")
    A("  v_add_u32 v5, 0x3000, v4")
    A("  global_load_dwordx4 v[8:11], v4, s[24:25]")
    A("  s_cmp_ge_u32 s28, 4")
    A("  s_cbranch_scc1 KB_NOC2")
    A("  v_cmp_gt_u32 vcc, 232, v0")
    A("  s_and_saveexec_b64 s[34:35], vcc")
    A("  global_load_dwordx4 v[12:15], v5, s[24:25]")
    A("  s_mov_b64 exec, s[34:35]")
    A("KB_NOC2:")
    A(f"  s_add_u32 s26, s14, {STAB_OFF}")
    A("  s_addc_u32 s27, s15, 0")
    A("  s_and_b32 s60, s28, 3")
    A("  s_lshl_b32 s60, s60, 17")
    A(f"  s_add_u32 s60, s60, {WF_OFF}")
    A("  s_add_u32 s20, s14, s60")
    A("  s_addc_u32 s21, s15, 0")
    A("  s_and_b32 s21, s21, 0xffff")
    A("  s_mov_b32 s22, 131072")
    A("  s_mov_b32 s23, 0x20000")
    for i in range(4):
        A(f"  v_mov_b32 v{20+i}, 0")
        A(f"  v_mov_b32 v{24+i}, -1")
    A(f"  v_add_u32 v5, {KB_P}, v4")
    for k in range(3):
        A(f"  ds_write_b128 v5, v[20:23] offset:{k*12288}")
    A("  v_cmp_gt_u32 vcc, 416, v0")
    A("  s_and_saveexec_b64 s[34:35], vcc")
    A(f"  ds_write_b128 v5, v[20:23] offset:{3*12288}")
    A("  s_mov_b64 exec, s[34:35]")
    A(f"  v_add_u32 v5, {KB_EL}, v4")
    A("  v_cmp_gt_u32 vcc, 328, v0")
    A("  s_and_saveexec_b64 s[34:35], vcc")
    A("  ds_write_b128 v5, v[24:27]")
    A("  s_mov_b64 exec, s[34:35]")
    A(f"  v_add_u32 v5, {KB_CNT}, v4")
    A("  v_cmp_gt_u32 vcc, 4, v0")
    A("  s_and_saveexec_b64 s[34:35], vcc")
    A("  ds_write_b128 v5, v[20:23]")
    A("  s_mov_b64 exec, s[34:35]")
    A("  s_cmp_ge_u32 s50, 3")
    A("  s_cbranch_scc1 KB_NOS")
    for kk in range(8):
        A(f"  s_waitcnt vmcnt({15-2*kk})")
        c = "0" if kk == 0 else "v[28:31]"
        A(f"  v_mfma_f32_16x16x32_bf16 v[28:31], {vr(64+4*kk,4)}, {vr(96+4*kk,4)}, {c}")
    A("  s_lshl_b32 s60, s50, 9")
    A(f"  s_add_u32 s60, s60, {KB_SD}")
    A("  v_lshlrev_b32 v6, 7, v3")
    A("  v_bfe_u32 v7, v2, 1, 1")
    A("  v_lshl_add_u32 v6, v7, 4, v6")
    A("  v_lshrrev_b32 v7, 2, v2")
    A("  v_lshl_add_u32 v6, v7, 2, v6")
    A("  v_add_u32 v6, s60, v6")
    A("  v_lshl_add_u32 v16, v1, 5, s60")
    A("  s_lshl_b32 s61, s50, 4")
    A("  v_add_u32 v17, s61, v1")
    A("  v_add_u32 v18, s29, v17")
    A("  v_lshlrev_b32 v18, 4, v18")
    A("  v_and_b32 v7, 1, v2")
    A("  v_cmp_eq_u32 vcc, 0, v7")
    A("  v_cmp_gt_u32 s[42:43], 40, v17")
    for r in range(4):
        A(f"  v_add_f32_dpp v{32+r}, v{28+r}, v{28+r} quad_perm:[1,0,3,2] row_mask:0xf bank_mask:0xf")
    A("  s_and_saveexec_b64 s[34:35], vcc")
    for r in range(4):
        A(f"  ds_write_b32 v6, v{32+r} offset:{r*32}")
    A("  s_and_b64 exec, s[42:43], 0xffff")
    A("  s_waitcnt lgkmcnt(0)")
    A("  ds_read_b128 v[32:35], v16")
    A("  s_waitcnt lgkmcnt(0)")
    A("  global_store_dwordx4 v18, v[32:35], s[26:27] sc1")
    A("  s_mov_b64 exec, -1")
    A("  s_waitcnt vmcnt(1)")
    A("  s_branch KB_B0")
    A("KB_NOS:")
    A("  s_waitcnt vmcnt(0)")
    A("KB_B0:")
    A("  s_waitcnt lgkmcnt(0)")
    A("  s_barrier")
    STAMP(1)
    A("  s_mov_b64 s[34:35], 0")
    A("  v_mov_b32 v6, 1")
    for e in range(8):
        A(f"  v_cmp_gt_u32 s[{36+2*e}:{37+2*e}], s33, v{8+e}")
        A(f"  v_cmp_eq_u32 vcc, s33, v{8+e}")
        A(f"  v_lshrrev_b32 v{16+e}, 18, v{8+e}")
        A("  s_or_b64 s[34:35], s[34:35], vcc")
        A(f"  v_lshlrev_b32 v7, 2, v{16+e}")
        A(f"  v_add_u32 v7, {KB_CNT}, v7")
        A(f"  s_mov_b64 exec, s[{36+2*e}:{37+2*e}]")
        A(f"  ds_add_rtn_u32 v{24+e}, v7, v6")
        A("  s_mov_b64 exec, -1")
    A("  s_waitcnt lgkmcnt(0)")
    for e in range(8):
        A(f"  s_mov_b64 exec, s[{36+2*e}:{37+2*e}]")
        A(f"  v_cmp_lt_u32 vcc, 127, v{24+e}")
        A(f"  v_min_u32 v{24+e}, 127, v{24+e}")
        A(f"  v_lshlrev_b32 v7, 9, v{16+e}")
        A("  s_or_b64 s[34:35], s[34:35], vcc")
        A(f"  v_lshl_add_u32 v7, v{24+e}, 2, v7")
        A(f"  v_add_u32 v7, {KB_EL}, v7")
        A(f"  ds_write_b32 v7, v{8+e}")
    A("  s_mov_b64 exec, -1")
    A("  s_cmp_eq_u64 s[34:35], 0")
    A("  s_cbranch_scc1 KB_NOFLAG")
    A(f"  v_mov_b32 v7, {KB_FLAG}")
    A("  ds_write_b32 v7, v6")
    A("KB_NOFLAG:")
    A("  s_waitcnt lgkmcnt(0)")
    A("  s_barrier")
    STAMP(2)
    A(f"  v_mov_b32 v7, {KB_CNT}")
    A("  ds_read_b32 v28, v7 offset:48")
    A("  s_cmp_ge_u32 s28, 8")
    A("  s_cbranch_scc1 KB_MS")
    A("  ds_read_b128 v[16:19], v7")
    A("  ds_read_b128 v[20:23], v7 offset:16")
    A("  ds_read_b128 v[24:27], v7 offset:32")
    A("  s_waitcnt lgkmcnt(0)")
    A("  v_readfirstlane_b32 s51, v28")
    for i in range(10):
        A(f"  v_readfirstlane_b32 s{70+i}, v{16+i}")
    A("  s_cmp_lg_u32 s51, 0")
    A("  s_cbranch_scc1 KB_FALLBACK")
    for i in range(10):
        A(f"  s_add_u32 s{70+i}, s{70+i}, 31")
        A(f"  s_lshr_b32 s{70+i}, s{70+i}, 5")
        A(f"  s_max_u32 s{70+i}, s{70+i}, 1")
    A("  s_mov_b32 s48, s70")
    for i in range(1, 8):
        A(f"  s_lshl_b32 s61, s{70+i}, {4*i}")
        A("  s_or_b32 s48, s48, s61")
    A("  s_lshl_b32 s61, s79, 4")
    A("  s_or_b32 s49, s78, s61")
    A(f"  v_lshlrev_b32 v{V_RC}, 4, v2")
    A(f"  v_lshlrev_b32 v{V_G32}, 5, v3")
    A(f"  v_mov_b32 v{V_ONE}, 1")
    A(f"  v_mov_b32 v{V_CTR}, {KB_CTR}")
    A("  s_mov_b32 s62, s28")
    A("  s_mov_b32 s63, 0")
    A("  s_mov_b32 s52, 5")
    A("  s_mov_b32 s54, 0")
    A("  s_lshl_b32 s44, s28, 9")
    A(f"  s_add_u32 s44, s44, {KB_EL}")
    A("  s_mov_b32 s64, 0")
    A("  s_movk_i32 s59, 128")
    nsteps_of(28, 53)
    for st in range(DPRE):
        issue_a()
        A("  s_waitcnt lgkmcnt(0)")
        issue_b(st)
    if DPRE < D:
        lds_spin("KB_SDW", KB_SDF, 4, 6, 7)
    for st in range(DPRE, D):
        issue_a()
        A("  s_waitcnt lgkmcnt(0)")
        issue_b(st)
    issue_a()
    A(f"  v_mul_u32_u24 v{V_PL}, {PS}, v2")
    A(f"  v_lshl_add_u32 v{V_PL}, v3, 4, v{V_PL}")
    A(f"  v_mul_u32_u24 v{V_A2L}, {A2S}, v3")
    A(f"  v_add_u32 v{V_A2L}, v{V_A2L}, v{V_RC}")
    A("  s_mov_b32 s60, 0x3f803f80")
    for i in range(4):
        A(f"  v_mov_b32 v{ONES+i}, s60")
    STAMP(3)
    cons_next_item()
    A("  s_mov_b32 s45, s42")
    A("  s_mov_b32 s41, 1")
    A("  s_mov_b32 s65, 0")
    lds_spin("KB_GSW", KB_GS, 4, 6, 7)
    A(f"  v_add_u32 v{V_TMP2}, s43, v{V_PL}")
    A(f"  ds_read_b128 {vr(PF,4)}, v{V_TMP2}")
    STAMP(4)
    if os.environ.get("SECT") == "1":
        for i in range(6):
            A(f"  s_mov_b32 s{88+i}, 0")
        A("  s_memtime s[98:99]")
        A("  s_waitcnt lgkmcnt(0)")
        A("  s_mov_b32 s97, s98")
    A(f"  s_setprio {os.environ.get('GPRIO', '2')}")
    A("KB_LOOP:")
    for st in range(D):
        pf = PF if (st & 1) == 0 else PF2
        pfn = PF2 if (st & 1) == 0 else PF
        A("  s_sub_u32 s55, s55, 1")
        A("  s_add_u32 s43, s43, 64")
        A("  s_mov_b32 s40, 0")
        A("  s_cmp_eq_u32 s55, 0")
        A(f"  s_cbranch_scc1 KB_CNO{st}")
        def cn():
            cons_next_item()
            A("  s_mov_b32 s40, 1")
        ool(f"KB_CNO{st}", f"KB_CN{st}", cn)
        A(f"KB_CN{st}:")
        SEC(0)
        A(f"  s_waitcnt vmcnt({8*(D-1)}) lgkmcnt(0)")
        SEC(1)
        A(f"  v_add_u32 v{V_TMP2}, s43, v{V_PL}")
        A(f"  ds_read_b128 {vr(pfn,4)}, v{V_TMP2}")
        signal_pending(st)
        A("  s_cmp_lg_u32 s41, 0")
        A(f"  s_cbranch_scc1 KB_CF{st}")
        def cf(st=st, pf=pf):
            consume(st, pf, True)
            for i in range(2):
                A(f"  v_mad_u32_u16 v{AD+i}, v{ENT+i}, s32, v{V_RC}")
            consume_tail(pf, True)
        ool(f"KB_CF{st}", f"KB_CC{st}", cf)
        consume(st, pf, False)
        for i in range(2):
            A(f"  v_mad_u32_u16 v{AD+i}, v{ENT+i}, s32, v{V_RC}")
        consume_tail(pf, False)
        A(f"KB_CC{st}:")
        SEC(2)
        for i in range(2, 8):
            A(f"  v_mad_u32_u16 v{AD+i}, v{ENT+i}, s32, v{V_RC}")
        for i in range(8):
            A(f"  buffer_load_dwordx4 {vr(RB+32*st+4*i,4)}, v{AD+i}, s[16:19], s64 offen")
        SEC(3)
        issue_a()
        SEC(4)
        A("  s_mov_b32 s41, s40")
        A("  s_cmp_lg_u32 s40, 0")
        A(f"  s_cbranch_scc1 KB_FIN{st}")
        def fin():
            finalize()
            A("  s_mov_b32 s45, s42")
            A("  s_cmp_eq_u32 s56, 31")
            A("  s_cbranch_scc1 KB_GEND")
        ool(f"KB_FIN{st}", f"KB_NOFIN{st}", fin)
        A(f"KB_NOFIN{st}:")
        SEC(5)
    A("  s_branch KB_LOOP")
    A("KB_GEND:")
    A("  s_waitcnt lgkmcnt(0)")
    signal_pending("E")
    A("KB_GDONE:")
    STAMP(5); RSTAMP(15); STAMP_OUT(14, 28, 1 << 20)
    A("  s_endpgm")
    emit_ool()
    A("KB_MS:")
    A("  s_setprio 3")
    A("  v_subrev_u32 v38, 512, v0")
    A("  v_lshlrev_b32 v5, 2, v38")
    A(f"  v_add_u32 v5, {KB_EL}, v5")
    for rd in range(5):
        A(f"  ds_read_b32 v{8+rd}, v5 offset:{1024*rd}")
    A("  s_waitcnt lgkmcnt(0)")
    A("  v_readfirstlane_b32 s51, v28")
    A("  s_cmp_lg_u32 s51, 0")
    A("  s_cbranch_scc1 KB_FALLBACK")
    OFFR = [13, 14, 15, 36, 37]
    DDR = 104
    for rd in range(5):
        A(f"  v_cmp_ne_u32 s[{36+2*rd}:{37+2*rd}], -1, v{8+rd}")
        A(f"  v_and_b32 v7, 0xffff, v{8+rd}")
        A(f"  v_lshlrev_b32 v{OFFR[rd]}, 4, v7")
    for rd in range(5):
        A(f"  s_mov_b64 exec, s[{36+2*rd}:{37+2*rd}]")
        A(f"  global_load_dwordx4 {vr(16+4*rd,4)}, v{OFFR[rd]}, s[26:27] sc1")
    A("  s_mov_b64 exec, -1")
    for rd in range(5):
        A(f"  v_lshrrev_b32 v7, 16, v{8+rd}")
        A(f"  v_lshlrev_b32 v7, 5, v7")
        A(f"  v_add_u32 v7, {KB_SD+16}, v7")
        A(f"  s_mov_b64 exec, s[{36+2*rd}:{37+2*rd}]")
        A(f"  ds_read_b128 {vr(DDR+4*rd,4)}, v7")
        A("  s_mov_b64 exec, -1")
    A("  v_lshlrev_b32 v5, 4, v1")
    A("  v_add_u32 v6, 0x10000, v5")
    for i in range(WEARLY):
        wload(i, 5, 6)
    A("  s_mov_b32 s49, 0")
    A(f"  s_waitcnt vmcnt({4*WEARLY})")
    A("  s_branch KB_SCHK")
    A("KB_SRETRY:")
    for rd in range(5):
        A(f"  s_mov_b64 exec, s[{36+2*rd}:{37+2*rd}]")
        A(f"  global_load_dwordx4 {vr(16+4*rd,4)}, v{OFFR[rd]}, s[26:27] sc1")
    A("  s_mov_b64 exec, -1")
    A("  s_waitcnt vmcnt(0)")
    A("KB_SCHK:")
    A("  s_mov_b64 s[46:47], 0")
    for rd in range(5):
        A(f"  s_mov_b64 exec, s[{36+2*rd}:{37+2*rd}]")
        for h in range(4):
            A(f"  v_cmp_eq_u32 vcc, -1, v{16+4*rd+h}")
            A("  s_or_b64 s[46:47], s[46:47], vcc")
    A("  s_mov_b64 exec, -1")
    A("  s_cmp_eq_u64 s[46:47], 0")
    A("  s_cbranch_scc1 KB_SOK")
    A("  s_add_u32 s49, s49, 1")
    A("  s_cmp_ge_u32 s49, 0x40000")
    A("  s_cbranch_scc1 KB_SOK")
    A("  s_sleep 2")
    A("  s_branch KB_SRETRY")
    A("KB_SOK:")
    if DIAG:
        A("  s_mov_b32 s90, s49")
    lds_signal(KB_SDF, 6, 7)
    STAMP(3)
    A("  s_mov_b32 s60, 0x3e4ccccd")
    for rd in range(5):
        S = 16 + 4 * rd
        Dd = DDR + 4 * rd
        A(f"  s_mov_b64 exec, s[{36+2*rd}:{37+2*rd}]")
        for h in range(4):
            A(f"  v_add_f32 v{S+h}, v{S+h}, v{Dd+h}")
        for h in range(4):
            A(f"  v_mul_f32 v{Dd+h}, s60, v{S+h}")
        for h in range(4):
            A(f"  v_max_f32 v{S+h}, v{S+h}, v{Dd+h}")
        for h in range(4):
            A(f"  v_exp_f32 v{S+h}, v{S+h}")
        A(f"  v_add_u32 v6, {256*rd}, v38")
        A("  v_lshrrev_b32 v7, 7, v6")
        A(f"  v_mul_u32_u24 v7, {PG}, v7")
        A("  v_and_b32 v6, 127, v6")
        A("  v_lshl_add_u32 v7, v6, 1, v7")
        A(f"  v_bfe_u32 v6, v{8+rd}, 16, 2")
        A(f"  v_mul_u32_u24 v6, {4*PS}, v6")
        A("  v_add_u32 v7, v7, v6")
        A(f"  v_add_u32 v7, {KB_P}, v7")
        A(f"  v_cvt_pk_bf16_f32 v{Dd}, v{S}, v{S+1}")
        A(f"  v_cvt_pk_bf16_f32 v{Dd+1}, v{S+2}, v{S+3}")
        A(f"  ds_write_b16 v7, v{Dd}")
        A(f"  ds_write_b16_d16_hi v7, v{Dd} offset:{PS}")
        A(f"  ds_write_b16 v7, v{Dd+1} offset:{2*PS}")
        A(f"  ds_write_b16_d16_hi v7, v{Dd+1} offset:{3*PS}")
    A("  s_mov_b64 exec, -1")
    lds_signal(KB_GS, 6, 7)
    A(f"  s_setprio {os.environ.get('MPRIO', '0')}")
    SPF = os.environ.get("SPF", "0")
    if SPF == "2":
        spf_code()
    gemm_setup()
    for i in range(WEARLY, RW):
        wload(i)
    if SPF == "1":
        spf_code()
    A("  s_branch KB_MW2")
    A("KB_FALLBACK:")
    A("  s_cmp_ge_u32 s28, 8")
    A("  s_cbranch_scc1 KB_FBD")
    gen_fallback()
    A("KB_FBD:")
    A(f"  v_mov_b32 v7, {KB_DONE}")
    A("  v_mov_b32 v8, 10")
    A("  v_mov_b32 v9, 10")
    A("  ds_write_b64 v7, v[8:9]")
    A("  s_waitcnt vmcnt(0) lgkmcnt(0)")
    A("  s_barrier")
    A("  s_cmp_lt_u32 s28, 8")
    A("  s_cbranch_scc1 KB_END")
    A("KB_MW:")
    gemm_setup()
    for i in range(RW):
        wload(i)
    A("KB_MW2:")
    STAMP(4)
    gen_gemm()
    STAMP(7); RSTAMP(15); STAMP_OUT(14, 28, 1 << 20)
    A("KB_END:")
    A("  s_endpgm")

def gen_fallback():
    A("  s_mov_b32 s62, 0")
    A("  v_lshlrev_b32 v48, 3, v1")
    A("  v_lshlrev_b32 v49, 2, v1")
    A("  s_mov_b32 s66, 0x3e4ccccd")
    A("  s_mov_b32 s67, 0xffff0000")
    A("KF_NODE:")
    A("  s_mul_i32 s63, s28, 5")
    A("  s_add_u32 s63, s63, s62")
    A("  s_add_u32 s64, s63, s29")
    for i in range(20):
        A(f"  v_mov_b32 v{16+i}, 0")
    A("  s_lshl_b32 s60, s63, 5")
    A(f"  s_add_u32 s60, s60, {KB_SD+16}")
    A("  v_mov_b32 v7, s60")
    A("  ds_read_b128 v[36:39], v7")
    A("  s_mov_b32 s65, 0")
    A("KF_CHUNK:")
    A("  v_add_u32 v50, s65, v49")
    A("  global_load_dword v40, v50, s[8:9]")
    A("  global_load_dword v41, v50, s[6:7]")
    A("  s_waitcnt vmcnt(0) lgkmcnt(0)")
    A("  v_cmp_eq_u32 s[68:69], s64, v40")
    A("  s_nop 1")
    A("KF_EDGE:")
    A("  s_cmp_eq_u64 s[68:69], 0")
    A("  s_cbranch_scc1 KF_NEXT")
    A("  s_ff1_i32_b64 s60, s[68:69]")
    A("  s_bitset0_b64 s[68:69], s60")
    A("  v_readlane_b32 s61, v41, s60")
    A("  s_nop 3")
    A("  s_lshl_b32 s60, s61, 9")
    A("  v_add_u32 v50, s60, v48")
    A("  buffer_load_dwordx2 v[42:43], v50, s[16:19], 0 offen")
    A("  s_lshl_b32 s60, s61, 4")
    A("  v_mov_b32 v51, s60")
    A("  s_mov_b32 s61, 0")
    A("KF_SRETRY:")
    A("  global_load_dwordx4 v[44:47], v51, s[26:27] sc1")
    A("  s_waitcnt vmcnt(0)")
    A("  s_mov_b64 s[42:43], 0")
    for h in range(4):
        A(f"  v_cmp_eq_u32 vcc, -1, v{44+h}")
        A("  s_or_b64 s[42:43], s[42:43], vcc")
    A("  s_cmp_eq_u64 s[42:43], 0")
    A("  s_cbranch_scc1 KF_SOK")
    A("  s_add_u32 s61, s61, 1")
    A("  s_cmp_ge_u32 s61, 0x40000")
    A("  s_cbranch_scc1 KF_SOK")
    A("  s_sleep 4")
    A("  s_branch KF_SRETRY")
    A("KF_SOK:")
    for h in range(4):
        A(f"  v_add_f32 v{44+h}, v{44+h}, v{36+h}")
        A(f"  v_mul_f32 v52, s66, v{44+h}")
        A(f"  v_max_f32 v{44+h}, v{44+h}, v52")
        A(f"  v_exp_f32 v{44+h}, v{44+h}")
    A("  s_nop 0")
    A("  v_cvt_pk_bf16_f32 v52, v44, v45")
    A("  v_cvt_pk_bf16_f32 v53, v46, v47")
    A("  v_lshlrev_b32 v44, 16, v52")
    A("  v_and_b32 v45, s67, v52")
    A("  v_lshlrev_b32 v46, 16, v53")
    A("  v_and_b32 v47, s67, v53")
    A("  v_lshlrev_b32 v52, 16, v42")
    A("  v_and_b32 v53, s67, v42")
    A("  v_lshlrev_b32 v54, 16, v43")
    A("  v_and_b32 v55, s67, v43")
    for h in range(4):
        A(f"  v_add_f32 v{32+h}, v{32+h}, v{44+h}")
        for f in range(4):
            A(f"  v_fma_f32 v{16+4*h+f}, v{44+h}, v{52+f}, v{16+4*h+f}")
    A("  s_branch KF_EDGE")
    A("KF_NEXT:")
    A("  s_add_u32 s65, s65, 256")
    A(f"  s_cmp_lt_u32 s65, {E*4}")
    A("  s_cbranch_scc1 KF_CHUNK")
    A("  s_mov_b32 s61, 0x3089705f")
    A(f"  s_mul_i32 s60, s63, {A2S}")
    A("  v_add_u32 v50, s60, v48")
    for h in range(4):
        A(f"  v_add_f32 v{32+h}, s61, v{32+h}")
        A(f"  v_rcp_f32 v{32+h}, v{32+h}")
        A("  s_nop 0")
        A(f"  v_mul_f32 v{32+h}, 0.25, v{32+h}")
        for f in range(4):
            A(f"  v_mul_f32 v{16+4*h+f}, v{16+4*h+f}, v{32+h}")
        A(f"  v_cvt_pk_bf16_f32 v52, v{16+4*h}, v{17+4*h}")
        A(f"  v_cvt_pk_bf16_f32 v53, v{18+4*h}, v{19+4*h}")
        A(f"  ds_write_b64 v50, v[52:53] offset:{h*512}")
    A("  s_add_u32 s62, s62, 1")
    A("  s_cmp_lt_u32 s62, 5")
    A("  s_cbranch_scc1 KF_NODE")

RW = 4
WR = 40
AF = 104
GACC = 224 - 0
def gacc(mt, nt):
    i = mt * 4 + nt
    if i < 10:
        return 128 + 4 * i
    return 32 + 4 * (i - 10)
VW0 = 4
VW1 = 5
VA0 = 6
VA1 = 7
VAB = 8
VAB = 13

VWA = [4, 5, 6, 7]
VWB = [8, 9, 10, 11]
VAH = [12, 13, 14, 15]
VAH2 = [16, 17, 18, 19]
VPO = 20
VPO2 = 21
def gemm_setup():
    A("  s_and_b32 s66, s2, 3")
    for hh in range(4):
        A(f"  s_add_u32 s60, s66, {hh}")
        A("  s_and_b32 s60, s60, 3")
        A(f"  s_lshl_b32 s{36+2*hh}, s60, 14")
        A(f"  s_add_u32 s{37+2*hh}, s{36+2*hh}, 8192")
        A("  s_lshl_b32 s60, s60, 9")
        if hh == 0:
            A(f"  v_mul_u32_u24 v{VPO}, {A2S}, v2")
            A(f"  v_lshl_add_u32 v{VPO}, v3, 4, v{VPO}")
        A(f"  v_add_u32 v{VAH[hh]}, s60, v{VPO}")
        A(f"  v_add_u32 v{VAH2[hh]}, {32*A2S}, v{VAH[hh]}")
    A(f"  v_lshlrev_b32 v{VWA[0]}, 4, v1")
    for q in range(1, 4):
        A(f"  v_add_u32 v{VWA[q]}, {2048*q}, v{VWA[0]}")
    for q in range(4):
        A(f"  v_add_u32 v{VWB[q]}, 0x10000, v{VWA[q]}")

def kdec(i):
    half = i >> 4; t = i & 15
    return half, t >> 2, t & 3

def wload(i, a0=None, a1=None):
    half, hh, q = kdec(i)
    slot = i % RW
    b = WR + 16 * slot
    so = f"s{36+2*hh+half}"
    A(f"  buffer_load_dwordx4 {vr(b,4)}, v{VWA[q]}, s[20:23], {so} offen")
    A(f"  buffer_load_dwordx4 {vr(b+4,4)}, v{VWA[q]}, s[20:23], {so} offen offset:1024")
    A(f"  buffer_load_dwordx4 {vr(b+8,4)}, v{VWB[q]}, s[20:23], {so} offen")
    A(f"  buffer_load_dwordx4 {vr(b+12,4)}, v{VWB[q]}, s[20:23], {so} offen offset:1024")

def aload(i):
    half, hh, q = kdec(i)
    b = AF + 12 * (i & 1)
    o = (4 * half + q) * 64
    A(f"  ds_read_b128 {vr(b,4)}, v{VAH[hh]} offset:{o}")
    A(f"  ds_read_b128 {vr(b+4,4)}, v{VAH[hh]} offset:{o+16*A2S}")
    A(f"  ds_read_b128 {vr(b+8,4)}, v{VAH2[hh]} offset:{o}")

VA0 = 22
VA1 = 23
def poll(half):
    A(f"  v_mov_b32 v{VA0}, {KB_DONE + 4*half}")
    A(f"KB_POLL{half}:")
    A(f"  ds_read_b32 v{VA1}, v{VA0}")
    A("  s_waitcnt lgkmcnt(0)")
    A(f"  v_readfirstlane_b32 s60, v{VA1}")
    A("  s_cmp_ge_u32 s60, 10")
    A(f"  s_cbranch_scc1 KB_POLLD{half}")
    A("  s_sleep 2")
    A(f"  s_branch KB_POLL{half}")
    A(f"KB_POLLD{half}:")

def gen_gemm():
    for i in range(32):
        if (i & 15) == 0:
            poll(i >> 4)
            if i == 16: STAMP(6)
            else: STAMP(5)
            aload(i)
        nxt = (i + 1) < 32 and ((i + 1) & 15) != 0
        if nxt:
            aload(i + 1)
        rem = min(RW - 1, 31 - i)
        A(f"  s_waitcnt vmcnt({4*rem})")
        A(f"  s_waitcnt lgkmcnt({3 if nxt else 0})")
        slot = i % RW
        b = AF + 12 * (i & 1)
        for mt in range(3):
            for nt in range(4):
                a = gacc(mt, nt)
                c = "0" if i == 0 else vr(a, 4)
                A(f"  v_mfma_f32_16x16x32_bf16 {vr(a,4)}, {vr(WR+16*slot+4*nt,4)}, {vr(b+4*mt,4)}, {c}")
        if i + RW < 32:
            wload(i + RW)
    A("  v_add_u32 v6, s29, v2")
    A("  v_lshlrev_b32 v6, 9, v6")
    A("  v_lshl_add_u32 v6, v3, 4, v6")
    A("  s_and_b32 s60, s28, 3")
    A("  s_lshl_b32 s60, s60, 7")
    A("  v_add_u32 v6, s60, v6")
    A("  v_add_u32 v7, 0x2000, v6")
    A("  v_add_u32 v8, 0x4000, v6")
    A("  v_cmp_gt_u32 vcc, 8, v2")
    A("  s_nop 4")
    for mt in range(3):
        if mt == 2:
            A("  s_and_saveexec_b64 s[34:35], vcc")
        for p in range(2):
            a0 = gacc(mt, 2 * p); a1 = gacc(mt, 2 * p + 1)
            o = 40 + 8 * mt + 4 * p
            A(f"  v_cvt_pk_bf16_f32 v{o}, v{a0}, v{a0+1}")
            A(f"  v_cvt_pk_bf16_f32 v{o+1}, v{a0+2}, v{a0+3}")
            A(f"  v_cvt_pk_bf16_f32 v{o+2}, v{a1}, v{a1+1}")
            A(f"  v_cvt_pk_bf16_f32 v{o+3}, v{a1+2}, v{a1+3}")
            A(f"  global_store_dwordx4 v{6+mt}, {vr(o,4)}, s[12:13] offset:{64*p}")
    A("  s_mov_b64 exec, -1")

def desc(name, vgpr, sgpr):
    acc = (vgpr + 3) // 4 * 4
    A(f".amdhsa_kernel {name}")
    A(f"  .amdhsa_next_free_vgpr {vgpr}")
    A(f"  .amdhsa_next_free_sgpr {sgpr}")
    A(f"  .amdhsa_accum_offset {acc}")
    A("  .amdhsa_group_segment_fixed_size 0")
    A("  .amdhsa_kernarg_size 72")
    A("  .amdhsa_user_sgpr_count 2")
    A("  .amdhsa_user_sgpr_kernarg_segment_ptr 1")
    A("  .amdhsa_system_sgpr_workgroup_id_x 1")
    A(".end_amdhsa_kernel")

def main():
    A(HEADER.format(lds_a=KA_LDS, lds_b=KB_LDS).rstrip("\n"))
    gen_prep()
    gen_main()
    A('.section .rodata,"a"')
    A(".p2align 6")
    desc("gat_prep_kernel", 104, 102)
    A(".p2align 6")
    desc("gat_main_kernel", 168, 102)
    txt = "\n".join(x for x in out if x is not None) + "\n"
    path = sys.argv[1] if len(sys.argv) > 1 else "standalone__graph_attention_gat__graph.s"
    open(path, "w").write(txt)

main()
```

```python
import sys, os

N = 10000
E = 160000
CELL_BYTES = 16000
STAB_OFF = 4194304
WF_OFF = 5242880
BF_OFF = 6291456
XBYTES = N * 512

DIAG = os.environ.get("DIAG") == "1"
STAMP_OFF = 8 << 20
out = []
def A(s=""):
    out.append(s)
def STAMP(i):
    if not DIAG: return
    A("  s_memtime s[98:99]")
    A("  s_waitcnt lgkmcnt(0)")
    A(f"  s_mov_b32 s{82+i}, s98")
def RSTAMP(i):
    if not DIAG: return
    A("  s_memrealtime s[98:99]")
    A("  s_waitcnt lgkmcnt(0)")
    A(f"  s_mov_b32 s{82+i}, s98")
def STAMP_OUT(wsreg, wavereg, koff, v0=4, v1=5):
    if not DIAG: return
    A("  s_mov_b64 exec, 1")
    A("  s_lshl_b32 s98, s2, 4")
    A(f"  s_add_u32 s98, s98, s{wavereg}")
    A("  s_lshl_b32 s98, s98, 6")
    A(f"  s_add_u32 s98, s98, {STAMP_OFF + koff}")
    A(f"  v_mov_b32 v{v0}, s98")
    for i in range(16):
        A(f"  v_mov_b32 v{v1}, s{82+i}")
        A(f"  global_store_dword v{v0}, v{v1}, s[{wsreg}:{wsreg+1}] offset:{4*i}")
        A("  s_nop 1")

def vr(b, n):
    return f"v[{b}:{b+n-1}]"

HEADER = """; GAT: out[n] = mean_h sum_e alpha[e,h] * (x[src e] @ W_h)  computed as  (sum_e alpha x[src e]) @ W
; kernel 1 (prep): bins edges by dst, W@a vectors, W fragment shuffle, resets the logit table to a sentinel
; @launch kernel=gat_prep_kernel grid=(256,1,1) block=(640,1,1) lds={lds_a}
; @launch kernel=gat_main_kernel grid=(250,1,1) block=(512,1,1) lds={lds_b}
.amdgcn_target "amdgcn-amd-amdhsa--gfx950"
.text
"""

KA_CELLS = 0
KA_CNT = 16000
KA_LDS = 17024

K0SC = os.environ.get("K0SC", "")
WARM = int(os.environ.get("WARM", "1"))
def gen_prep():
    A(".globl gat_prep_kernel")
    A(".p2align 8")
    A(".type gat_prep_kernel,@function")
    A("gat_prep_kernel:")
    A("  s_cmp_ge_u32 s2, 256")
    A("  s_cbranch_scc1 KA_END")
    RSTAMP(14); STAMP(0)
    A("  s_load_dwordx8 s[4:11], s[0:1], 0")
    A("  s_load_dwordx4 s[12:15], s[0:1], 32")
    A("  s_load_dwordx2 s[16:17], s[0:1], 64")
    A("  v_lshrrev_b32 v6, 6, v0")
    A("  v_and_b32 v1, 63, v0")
    A("  v_and_b32 v2, 15, v1")
    A("  v_lshrrev_b32 v3, 4, v1")
    A("  v_readfirstlane_b32 s24, v6")
    A("  s_lshr_b32 s25, s2, 4")
    A("  s_and_b32 s26, s2, 15")
    A("  v_mov_b32 v4, 0")
    A("  v_mov_b32 v5, 0")
    A("  s_waitcnt lgkmcnt(0)")
    A("  s_cmp_ge_u32 s2, 250")
    A("  s_cbranch_scc1 KA_NOEDGE")
    A("  s_mul_i32 s27, s2, 2560")
    A("  v_lshl_add_u32 v6, v0, 2, s27")
    A("  global_load_dword v4, v6, s[8:9]")
    A("  global_load_dword v5, v6, s[6:7]")
    A("  s_mul_i32 s27, s2, 640")
    A(f"  s_add_u32 s27, s27, {STAB_OFF}")
    A("  v_lshl_add_u32 v6, v0, 4, s27")
    for i in range(4):
        A(f"  v_mov_b32 v{80+i}, -1")
    A("  v_cmp_gt_u32 vcc, 40, v0")
    A("  s_and_saveexec_b64 s[32:33], vcc")
    A("  s_cbranch_execz KA_NORST")
    A("  global_store_dwordx4 v6, v[80:83], s[16:17]")
    A("KA_NORST:")
    A("  s_mov_b64 exec, s[32:33]")
    A("KA_NOEDGE:")
    A("  s_mov_b32 s36, 0")
    A("  s_cmp_ge_u32 s24, 8")
    A("  s_cbranch_scc1 KA_SHUF_LOAD")
    A("  s_cmp_lg_u32 s24, 0")
    A("  s_cbranch_scc1 KA_INIT")
    A("  s_cmp_ge_u32 s2, 64")
    A("  s_cbranch_scc1 KA_INIT")
    A("  s_mov_b32 s36, 1")
    A("  v_mov_b32 v72, s12")
    A("  v_mov_b32 v73, s13")
    A("  v_mov_b32 v74, s14")
    A("  v_mov_b32 v75, s15")
    A("  v_cmp_eq_u32 vcc, 1, v2")
    A("  s_lshl_b32 s27, s25, 9")
    A("  v_lshlrev_b32 v76, 4, v3")
    A("  v_add_u32 v76, s27, v76")
    A("  v_cndmask_b32 v72, v72, v74, vcc")
    A("  v_cndmask_b32 v73, v73, v75, vcc")
    A("  v_add_co_u32 v72, vcc, v72, v76")
    A("  s_nop 1")
    A("  v_addc_co_u32 v73, vcc, 0, v73, vcc")
    for i in range(32):
        A(f"  v_mov_b32 v{40+i}, 0")
    A("  v_cmp_gt_u32 vcc, 2, v2")
    A("  s_and_saveexec_b64 s[32:33], vcc")
    for kk in range(8):
        A(f"  global_load_dwordx4 {vr(40+4*kk,4)}, v[72:73], off offset:{kk*64}")
    A("  s_mov_b64 exec, s[32:33]")
    A("  s_lshl_b32 s27, s2, 13")
    A("  v_lshlrev_b32 v76, 9, v2")
    A("  v_lshl_add_u32 v76, v3, 4, v76")
    A("  v_add_u32 v76, s27, v76")
    for kk in range(8):
        A(f"  global_load_dwordx4 {vr(8+4*kk,4)}, v76, s[10:11] offset:{kk*64}")
    A("  s_branch KA_INIT")
    A("KA_SHUF_LOAD:")
    A("  s_mov_b32 s36, 2")
    A("  s_lshr_b32 s27, s2, 5")
    A("  s_lshl_b32 s27, s27, 6")
    A("  s_and_b32 s34, s2, 31")
    A("  s_lshl_b32 s34, s34, 14")
    A("  s_add_u32 s27, s27, s34")
    A("  s_sub_u32 s34, s24, 8")
    A("  s_lshl_b32 s34, s34, 3")
    A("  s_add_u32 s27, s27, s34")
    A("  v_lshrrev_b32 v76, 2, v2")
    A("  v_lshlrev_b32 v76, 4, v76")
    A("  v_and_b32 v77, 3, v2")
    A("  v_lshl_add_u32 v76, v77, 1, v76")
    A("  v_lshl_add_u32 v76, v3, 12, v76")
    A("  v_add_u32 v76, s27, v76")
    for j in range(8):
        A(f"  global_load_ushort v{44+j}, v76, s[10:11] offset:{j*512}")
    A("KA_INIT:")
    A("  s_min_u32 s27, s2, 249")
    A("  s_mul_i32 s27, s27, 20480")
    A("  s_lshl_b32 s34, s24, 11")
    A("  s_add_u32 s27, s27, s34")
    A("  v_lshl_add_u32 v88, v1, 4, s27")
    A("  v_mov_b32 v78, v88")
    if WARM == 1:
        A("  global_load_dwordx4 v[96:99], v88, s[4:5]")
        A("  global_load_dwordx4 v[100:103], v88, s[4:5] offset:1024")
    for i in range(4):
        A(f"  v_mov_b32 v{80+i}, -1")
        A(f"  v_mov_b32 v{84+i}, 0")
    A("  v_lshlrev_b32 v79, 4, v0")
    A(f"  ds_write_b128 v79, v[80:83] offset:{KA_CELLS}")
    A("  v_cmp_gt_u32 vcc, 360, v0")
    A("  s_and_saveexec_b64 s[32:33], vcc")
    A(f"  ds_write_b128 v79, v[80:83] offset:{KA_CELLS+10240}")
    A("  s_mov_b64 exec, s[32:33]")
    A("  v_cmp_gt_u32 vcc, 64, v0")
    A("  s_and_saveexec_b64 s[32:33], vcc")
    A(f"  ds_write_b128 v79, v[84:87] offset:{KA_CNT}")
    A("  s_mov_b64 exec, s[32:33]")
    A("  s_waitcnt lgkmcnt(0)")
    A("  s_barrier")
    STAMP(1)
    A("  s_cmp_ge_u32 s2, 250")
    A("  s_cbranch_scc1 KA_NOPART")
    A("  s_cmp_eq_u32 s36, 1")
    A("  s_cbranch_scc1 KA_PW1")
    A("  s_cmp_eq_u32 s36, 2")
    A("  s_cbranch_scc1 KA_PW2")
    W2 = 2 if WARM == 1 else 0
    A(f"  s_waitcnt vmcnt({W2})")
    A("  s_branch KA_PW3")
    A("KA_PW1:")
    A(f"  s_waitcnt vmcnt({16+W2})")
    A("  s_branch KA_PW3")
    A("KA_PW2:")
    A(f"  s_waitcnt vmcnt({8+W2})")
    A("KA_PW3:")
    A("  v_mul_u32_u24 v6, 52429, v4")
    A("  v_lshrrev_b32 v6, 21, v6")
    A("  v_mul_u32_u24 v7, 40, v6")
    A("  v_sub_u32 v7, v4, v7")
    A("  v_lshl_or_b32 v7, v7, 16, v5")
    A("  v_lshlrev_b32 v88, 2, v6")
    A("  v_mov_b32 v89, 1")
    A(f"  ds_add_rtn_u32 v90, v88, v89 offset:{KA_CNT}")
    A("  v_mov_b32 v91, 0xfffffffe")
    A("  v_lshlrev_b32 v88, 6, v6")
    A("  s_waitcnt lgkmcnt(0)")
    A("  v_cmp_gt_u32 vcc, 15, v90")
    A("  v_min_u32 v90, 15, v90")
    A("  v_lshl_add_u32 v88, v90, 2, v88")
    A("  v_cndmask_b32 v7, v91, v7, vcc")
    A(f"  ds_write_b32 v88, v7 offset:{KA_CELLS}")
    A("KA_NOPART:")
    A("  s_waitcnt lgkmcnt(0)")
    A("  s_barrier")
    STAMP(2)
    A("  s_cmp_ge_u32 s2, 250")
    A("  s_cbranch_scc1 KA_NOCOPY")
    A(f"  ds_read_b128 v[80:83], v79 offset:{KA_CELLS}")
    A(f"  ds_read_b128 v[84:87], v79 offset:{KA_CELLS+10240}")
    A("  v_lshrrev_b32 v88, 2, v0")
    A(f"  v_mul_u32_u24 v88, {CELL_BYTES}, v88")
    A("  v_and_b32 v89, 3, v0")
    A("  v_lshl_add_u32 v88, v89, 4, v88")
    A("  s_lshl_b32 s27, s2, 6")
    A("  v_add_u32 v88, s27, v88")
    A(f"  v_add_u32 v89, {160*CELL_BYTES}, v88")
    A("  s_waitcnt lgkmcnt(0)")
    A("  global_store_dwordx4 v88, v[80:83], s[16:17]"+K0SC)
    A("  v_cmp_gt_u32 vcc, 360, v0")
    A("  s_and_saveexec_b64 s[32:33], vcc")
    A("  s_cbranch_execz KA_CP2")
    A("  global_store_dwordx4 v89, v[84:87], s[16:17]"+K0SC)
    A("KA_CP2:")
    A("  s_mov_b64 exec, s[32:33]")
    A("KA_NOCOPY:")
    STAMP(3)
    A("  s_cmp_eq_u32 s36, 0")
    A("  s_cbranch_scc1 KA_FIN")
    A("  s_cmp_eq_u32 s36, 2")
    A("  s_cbranch_scc1 KA_SHUF_ST")
    A("  s_waitcnt vmcnt(0)")
    for kk in range(8):
        c = "0" if kk == 0 else "v[92:95]"
        A(f"  v_mfma_f32_16x16x32_bf16 v[92:95], {vr(8+4*kk,4)}, {vr(40+4*kk,4)}, {c}")
    A("  s_lshr_b32 s27, s26, 1")
    A("  s_lshl_b32 s27, s27, 10")
    A("  s_and_b32 s34, s26, 1")
    A("  s_lshl_b32 s34, s34, 9")
    A("  s_add_u32 s27, s27, s34")
    A("  s_lshl_b32 s34, s25, 6")
    A("  s_add_u32 s27, s27, s34")
    A(f"  s_add_u32 s27, s27, {BF_OFF}")
    A("  v_lshrrev_b32 v88, 1, v3")
    A("  v_lshlrev_b32 v88, 8, v88")
    A("  v_lshl_add_u32 v88, v2, 5, v88")
    A("  v_and_b32 v89, 1, v3")
    A("  v_lshl_add_u32 v88, v89, 3, v88")
    A("  v_add_u32 v88, s27, v88")
    A("  s_mov_b32 s34, 0x3fb8aa3b")
    A("  s_mov_b32 s35, 0xffff0000")
    A("  v_cmp_gt_u32 vcc, 2, v2")
    A("  s_nop 1")
    b = 92
    for r in range(4):
        A(f"  v_mul_f32 v{b+r}, s34, v{b+r}")
    A(f"  v_cvt_pk_bf16_f32 v80, v{b}, v{b+1}")
    A(f"  v_cvt_pk_bf16_f32 v81, v{b+2}, v{b+3}")
    A("  v_lshlrev_b32 v82, 16, v80")
    A("  v_and_b32 v83, s35, v80")
    A("  v_lshlrev_b32 v84, 16, v81")
    A("  v_and_b32 v85, s35, v81")
    for r in range(4):
        A(f"  v_sub_f32 v{82+r}, v{b+r}, v{82+r}")
    A("  v_cvt_pk_bf16_f32 v82, v82, v83")
    A("  v_cvt_pk_bf16_f32 v83, v84, v85")
    A("  s_and_saveexec_b64 s[32:33], vcc")
    A("  global_store_dwordx2 v88, v[80:81], s[16:17]")
    A("  global_store_dwordx2 v88, v[82:83], s[16:17] offset:16")
    A("  s_mov_b64 exec, s[32:33]")
    A("  s_branch KA_FIN")
    A("KA_SHUF_ST:")
    A("  s_waitcnt vmcnt(0)")
    for t in range(4):
        A(f"  v_lshl_or_b32 v{40+t}, v{45+2*t}, 16, v{44+2*t}")
    A("  s_lshl_b32 s27, s2, 11")
    A(f"  s_add_u32 s27, s27, {WF_OFF - 512*16}")
    A("  v_lshl_add_u32 v88, v0, 4, s27")
    A("  global_store_dwordx4 v88, v[40:43], s[16:17]"+K0SC)
    A("KA_FIN:")
    if WARM == 2:
        A("  global_load_dwordx4 v[96:99], v78, s[4:5]")
        A("  global_load_dwordx4 v[100:103], v78, s[4:5] offset:1024")
    L2W = int(os.environ.get("L2W", "0"))
    if L2W:
        A("  s_mov_b32 s40, s4")
        A("  s_and_b32 s41, s5, 0xffff")
        A(f"  s_mov_b32 s42, {XBYTES}")
        A("  s_mov_b32 s43, 0x20000")
        A("  s_lshr_b32 s27, s2, 3")
        A("  s_mul_i32 s27, s27, 160000")
        A("  s_mul_i32 s34, s24, 16000")
        A("  s_add_u32 s27, s27, s34")
        A("  v_lshl_add_u32 v88, v1, 4, s27")
        for i in range(L2W):
            A(f"  buffer_load_dwordx4 v[96:99], v88, s[40:43], 0 offen")
            A("  v_add_u32 v88, 0x400, v88")
    STAMP(4); RSTAMP(15); STAMP_OUT(16, 24, 0)
    A("KA_END:")
    A("  s_endpgm")

A2S = 2064
KB_A2 = 0
KB_P = 40 * A2S
PS = 272
PG = 16 * PS
KB_EL = KB_P + 10 * PG
KB_DUMMY = KB_EL + 5120
KB_SD = KB_DUMMY + 128
KB_CNT = KB_SD + 1536
KB_FLAG = KB_CNT + 48
KB_DONE = KB_CNT + 52
KB_LDS = KB_CNT + 64

D = 4
RB = 40
ACC = 168
DEN = 200
T0 = 204
PF = 220
ENT = 224
AD = 232
ONES = 240
V_RC = 244
V_G32 = 245
V_PL = 246
V_A2L = 247
V_TMP = 248
V_TMP2 = 249
V_ONE = 250

V_TE = 251
V_TP = 252
V_TA = 253
PF2 = 36

def issue_next_item():
    A(f"  v_readlane_b32 s61, v{V_TE}, s52")
    A("  s_add_u32 s52, s52, 1")
    A("  s_min_u32 s52, s52, 63")
    A("  s_and_b32 s44, s61, 0x3ffff")
    A("  s_bfe_u32 s53, s61, 0x40012")
    A("  s_lshr_b32 s64, s61, 14")
    A("  s_and_b32 s64, s64, 0x100")

OOL = []
def ool(label, back, fn):
    OOL.append((label, back, fn))
def emit_ool():
    for label, back, fn in OOL:
        A(f"{label}:")
        fn()
        A(f"  s_branch {back}")
    OOL.clear()

IA = [0]
def issue_a():
    n = IA[0]; IA[0] += 1
    A("  s_cmp_eq_u32 s53, 0")
    A(f"  s_cbranch_scc1 IAO_{n}")
    ool(f"IAO_{n}", f"IA_{n}", issue_next_item)
    A(f"IA_{n}:")
    A(f"  v_add_u32 v{V_TMP}, s44, v{V_G32}")
    A(f"  ds_read_b128 {vr(ENT,4)}, v{V_TMP}")
    A(f"  ds_read_b128 {vr(ENT+4,4)}, v{V_TMP} offset:16")
    A("  s_add_u32 s44, s44, 128")
    A("  s_sub_u32 s53, s53, 1")

def issue_b(st):
    for i in range(8):
        A(f"  v_mad_u32_u16 v{AD+i}, v{ENT+i}, s32, v{V_RC}")
    for i in range(8):
        A(f"  buffer_load_dwordx4 {vr(RB+32*st+4*i,4)}, v{AD+i}, s[16:19], s64 offen")

def perms(st, q, tb):
    R = lambda i: RB + 32 * st + 4 * i + q
    for t in range(4):
        A(f"  v_perm_b32 v{tb+t}, v{R(2*t+1)}, v{R(2*t)}, s30")
    for t in range(4):
        A(f"  v_perm_b32 v{tb+4+t}, v{R(2*t+1)}, v{R(2*t)}, s31")

def mf1(q, u, tb, pf, first):
    a = ACC + 4 * (2 * q + u)
    c = "0" if first else vr(a, 4)
    A(f"  v_mfma_f32_16x16x32_bf16 {vr(a,4)}, {vr(pf,4)}, {vr(tb+4*u,4)}, {c}")

def consume(st, pf, first):
    TA, TB = T0, T0 + 8
    R = lambda i, q: RB + 32 * st + 4 * i + q
    def P(q, tb, u):
        sel = "s30" if u == 0 else "s31"
        for t in range(4):
            A(f"  v_perm_b32 v{tb+4*u+t}, v{R(2*t+1,q)}, v{R(2*t,q)}, {sel}")
    c = "0" if first else vr(DEN, 4)
    P(0, TA, 0)
    A(f"  v_mfma_f32_16x16x32_bf16 {vr(DEN,4)}, {vr(pf,4)}, {vr(ONES,4)}, {c}")
    P(0, TA, 1)
    mf1(0, 0, TA, pf, first)
    P(1, TB, 0)
    mf1(0, 1, TA, pf, first)
    P(1, TB, 1)
    mf1(1, 0, TB, pf, first)
    P(2, TA, 0)
    mf1(1, 1, TB, pf, first)
    P(2, TA, 1)
    mf1(2, 0, TA, pf, first)
    P(3, TB, 0)
    mf1(2, 1, TA, pf, first)
    P(3, TB, 1)
    mf1(3, 0, TB, pf, first)

def consume_tail(pf, first):
    mf1(3, 1, T0 + 8, pf, first)

def finalize():
    A("  s_and_b32 s60, s45, 0xfffff")
    A(f"  v_add_u32 v{V_TMP2}, s60, v{V_A2L}")
    A("  s_mov_b32 s61, 0x3089705f")
    for r in range(4):
        A(f"  v_add_f32 v{DEN+r}, s61, v{DEN+r}")
    for r in range(4):
        A(f"  v_rcp_f32 v{DEN+r}, v{DEN+r}")
    A("  s_lshr_b32 s65, s45, 20")
    A("  s_lshl_b32 s65, s65, 2")
    A(f"  s_add_u32 s65, s65, {KB_DONE}")
    for r in range(4):
        A(f"  v_mul_f32 v{DEN+r}, 0.25, v{DEN+r}")
    for j in range(8):
        A(f"  v_pk_mul_f32 {vr(ACC+4*j,2)}, {vr(ACC+4*j,2)}, {vr(DEN,2)}")
        A(f"  v_pk_mul_f32 {vr(ACC+4*j+2,2)}, {vr(ACC+4*j+2,2)}, {vr(DEN+2,2)}")
    for r in range(4):
        tb = T0 + 4 * (r & 3)
        for t in range(4):
            A(f"  v_cvt_pk_bf16_f32 v{tb+t}, v{ACC+4*(2*t)+r}, v{ACC+4*(2*t+1)+r}")
        A(f"  ds_write_b128 v{V_TMP2}, {vr(tb,4)} offset:{r*512}")
    A(f"  v_mov_b32 v{V_TMP2}, s65")
    A("  s_mov_b32 s65, 0")
    A("  s_waitcnt lgkmcnt(0)")
    A("  s_mov_b64 exec, 1")
    A(f"  ds_add_u32 v{V_TMP2}, v{V_ONE}")
    A("  s_mov_b64 exec, -1")

def signal_pending(n):
    return
def signal_pending_old(n):
    def body():
        A(f"  v_mov_b32 v{V_TMP2}, s65")
        A("  s_mov_b64 exec, 1")
        A(f"  ds_add_u32 v{V_TMP2}, v{V_ONE}")
        A("  s_mov_b64 exec, -1")
        A("  s_mov_b32 s65, 0")
    A("  s_cmp_lg_u32 s65, 0")
    A(f"  s_cbranch_scc1 SPO_{n}")
    ool(f"SPO_{n}", f"SP_{n}", body)
    A(f"SP_{n}:")

def cons_next_item():
    A(f"  v_readlane_b32 s61, v{V_TP}, s54")
    A(f"  v_readlane_b32 s42, v{V_TA}, s54")
    A("  s_add_u32 s54, s54, 1")
    A("  s_min_u32 s54, s54, 63")
    A("  s_and_b32 s43, s61, 0x3ffff")
    A("  s_lshr_b32 s55, s61, 18")

def lds_spin(name, addr, target, vtmp, vtmp2):
    A(f"  v_mov_b32 v{vtmp}, {addr}")
    A(f"{name}:")
    A(f"  ds_read_b32 v{vtmp2}, v{vtmp}")
    A("  s_waitcnt lgkmcnt(0)")
    A(f"  v_readfirstlane_b32 s60, v{vtmp2}")
    A(f"  s_cmp_ge_u32 s60, {target}")
    A(f"  s_cbranch_scc1 {name}_D")
    A("  s_sleep 1")
    A(f"  s_branch {name}")
    A(f"{name}_D:")

def lds_signal(addr, vtmp, vone):
    A(f"  v_mov_b32 v{vtmp}, {addr}")
    A(f"  v_mov_b32 v{vone}, 1")
    A("  s_waitcnt lgkmcnt(0)")
    A("  s_mov_b64 exec, 1")
    A(f"  ds_add_u32 v{vtmp}, v{vone}")
    A("  s_mov_b64 exec, -1")

TCH = int(os.environ.get("TCH", "0"))
DPRE = int(os.environ.get("DPRE", "3"))
WEARLY = int(os.environ.get("WEARLY", "0"))
KB_SDF = KB_CNT + 40
KB_GS = KB_CNT + 44
WPRE = int(os.environ.get("WPRE", "0"))

def spf_code():
    for rd in range(5):
        A(f"SPF_L{rd}:")
        A(f"  s_cmp_eq_u64 s[{36+2*rd}:{37+2*rd}], 0")
        A(f"  s_cbranch_scc1 SPF_D{rd}")
        A(f"  s_ff1_i32_b64 s60, s[{36+2*rd}:{37+2*rd}]")
        A(f"  s_bitset0_b64 s[{36+2*rd}:{37+2*rd}], s60")
        A(f"  v_readlane_b32 s61, v{8+rd}, s60")
        A("  s_and_b32 s61, s61, 0xffff")
        A("  s_lshl_b32 s61, s61, 9")
        A("  s_add_u32 s60, s61, 256")
        A("  s_add_u32 s61, s61, 384")
        A("  s_load_dword s46, s[4:5], s60")
        A("  s_load_dword s47, s[4:5], s61")
        A(f"  s_branch SPF_L{rd}")
        A(f"SPF_D{rd}:")
    A("  s_waitcnt lgkmcnt(0)")

def SEC(i):
    if os.environ.get("SECT") != "1": return
    A("  s_memtime s[98:99]")
    A("  s_waitcnt lgkmcnt(0)")
    A("  s_sub_u32 s99, s98, s97")
    A(f"  s_add_u32 s{88+i}, s{88+i}, s99")
    A("  s_mov_b32 s97, s98")

def gen_main():
    A(".globl gat_main_kernel")
    A(".p2align 8")
    A(".type gat_main_kernel,@function")
    A("gat_main_kernel:")
    A("  s_cmp_ge_u32 s2, 250")
    A("  s_cbranch_scc1 KB_END")
    RSTAMP(14); STAMP(0)
    A("  s_load_dwordx4 s[4:7], s[0:1], 0")
    A("  s_load_dwordx2 s[8:9], s[0:1], 16")
    A("  s_load_dwordx2 s[12:13], s[0:1], 48")
    A("  s_load_dwordx2 s[14:15], s[0:1], 64")
    A("  v_lshrrev_b32 v6, 6, v0")
    A("  v_and_b32 v1, 63, v0")
    A("  v_and_b32 v2, 15, v1")
    A("  v_lshrrev_b32 v3, 4, v1")
    A("  v_readfirstlane_b32 s28, v6")
    A("  s_mul_i32 s29, s2, 40")
    A("  s_mov_b32 s30, 0x05040100")
    A("  s_mov_b32 s31, 0x07060302")
    A("  s_movk_i32 s32, 0x200")
    A("  s_mov_b32 s33, 0xfffffffe")
    A("  s_and_b32 s66, s2, 15")
    A("  v_lshlrev_b32 v4, 4, v0")
    for i in range(4):
        A(f"  v_mov_b32 v{12+i}, -1")
    A("  s_sub_u32 s50, s28, 4")
    A("  s_waitcnt lgkmcnt(0)")
    A("  s_mov_b32 s16, s4")
    A("  s_and_b32 s17, s5, 0xffff")
    A(f"  s_mov_b32 s18, {XBYTES}")
    A("  s_mov_b32 s19, 0x20000")
    A("  s_cmp_ge_u32 s50, 3")
    A("  s_cbranch_scc1 KB_CELLS")
    A("  s_lshl_b32 s60, s50, 4")
    A("  s_add_u32 s60, s60, s29")
    A("  v_add_u32 v6, s60, v2")
    A("  v_lshlrev_b32 v6, 9, v6")
    A("  v_lshl_add_u32 v6, v3, 4, v6")
    A(f"  s_add_u32 s60, s14, {BF_OFF}")
    A("  s_addc_u32 s61, s15, 0")
    A("  v_lshlrev_b32 v7, 4, v1")
    A("  v_add_u32 v5, 0x1000, v7")
    for kk in range(8):
        A(f"  buffer_load_dwordx4 {vr(64+4*kk,4)}, v6, s[16:19], 0 offen offset:{kk*64}")
        A(f"  global_load_dwordx4 {vr(96+4*kk,4)}, v{7 if kk<4 else 5}, s[60:61] offset:{(kk&3)*1024}")
    A("KB_CELLS:")
    A(f"  s_mul_i32 s60, s2, {CELL_BYTES}")
    A("  s_add_u32 s24, s14, s60")
    A("  s_addc_u32 s25, s15, 0")
    A("  v_add_u32 v5, 0x2000, v4")
    A("  global_load_dwordx4 v[8:11], v4, s[24:25]")
    A("  v_cmp_gt_u32 vcc, 488, v0")
    A("  s_and_saveexec_b64 s[34:35], vcc")
    A("  global_load_dwordx4 v[12:15], v5, s[24:25]")
    A("  s_mov_b64 exec, s[34:35]")
    if TCH:
        A("  s_lshr_b32 s60, s2, 3")
        A("  s_mul_i32 s60, s60, 1250")
        A(f"  s_mul_i32 s61, s28, {64*TCH}")
        A("  s_add_u32 s60, s60, s61")
        A("  v_add_u32 v5, s60, v1")
        A("  v_lshlrev_b32 v5, 7, v5")
        for i in range(TCH):
            A(f"  buffer_load_dword v{128+i}, v5, s[16:19], 0 offen")
            A("  v_add_u32 v5, 0x2000, v5")
    A(f"  s_add_u32 s26, s14, {STAB_OFF}")
    A("  s_addc_u32 s27, s15, 0")
    A("  s_and_b32 s60, s28, 3")
    A("  s_lshl_b32 s60, s60, 17")
    A(f"  s_add_u32 s60, s60, {WF_OFF}")
    A("  s_add_u32 s20, s14, s60")
    A("  s_addc_u32 s21, s15, 0")
    A("  s_and_b32 s21, s21, 0xffff")
    A("  s_mov_b32 s22, 131072")
    A("  s_mov_b32 s23, 0x20000")
    for i in range(4):
        A(f"  v_mov_b32 v{20+i}, 0")
        A(f"  v_mov_b32 v{24+i}, -1")
    A(f"  v_add_u32 v5, {KB_P}, v4")
    for k in range(5):
        A(f"  ds_write_b128 v5, v[20:23] offset:{k*8192}")
    A("  v_cmp_gt_u32 vcc, 160, v0")
    A("  s_and_saveexec_b64 s[34:35], vcc")
    A(f"  ds_write_b128 v5, v[20:23] offset:{5*8192}")
    A("  s_mov_b64 exec, s[34:35]")
    A(f"  v_add_u32 v5, {KB_EL}, v4")
    A("  v_cmp_gt_u32 vcc, 328, v0")
    A("  s_and_saveexec_b64 s[34:35], vcc")
    A("  ds_write_b128 v5, v[24:27]")
    A("  s_mov_b64 exec, s[34:35]")
    A(f"  v_add_u32 v5, {KB_CNT}, v4")
    A("  v_cmp_gt_u32 vcc, 4, v0")
    A("  s_and_saveexec_b64 s[34:35], vcc")
    A("  ds_write_b128 v5, v[20:23]")
    A("  s_mov_b64 exec, s[34:35]")
    A("  s_cmp_ge_u32 s50, 3")
    A("  s_cbranch_scc1 KB_NOS")
    for kk in range(8):
        A(f"  s_waitcnt vmcnt({16-2*kk+TCH})")
        c = "0" if kk == 0 else "v[28:31]"
        A(f"  v_mfma_f32_16x16x32_bf16 v[28:31], {vr(64+4*kk,4)}, {vr(96+4*kk,4)}, {c}")
    A("  s_lshl_b32 s60, s50, 9")
    A(f"  s_add_u32 s60, s60, {KB_SD}")
    A("  v_lshlrev_b32 v6, 7, v3")
    A("  v_bfe_u32 v7, v2, 1, 1")
    A("  v_lshl_add_u32 v6, v7, 4, v6")
    A("  v_lshrrev_b32 v7, 2, v2")
    A("  v_lshl_add_u32 v6, v7, 2, v6")
    A("  v_add_u32 v6, s60, v6")
    A("  v_lshl_add_u32 v16, v1, 5, s60")
    A("  s_lshl_b32 s61, s50, 4")
    A("  v_add_u32 v17, s61, v1")
    A("  v_add_u32 v18, s29, v17")
    A("  v_lshlrev_b32 v18, 4, v18")
    A("  v_and_b32 v7, 1, v2")
    A("  v_cmp_eq_u32 vcc, 0, v7")
    A("  v_cmp_gt_u32 s[42:43], 40, v17")
    for r in range(4):
        A(f"  v_add_f32_dpp v{32+r}, v{28+r}, v{28+r} quad_perm:[1,0,3,2] row_mask:0xf bank_mask:0xf")
    A("  s_and_saveexec_b64 s[34:35], vcc")
    for r in range(4):
        A(f"  ds_write_b32 v6, v{32+r} offset:{r*32}")
    A("  s_and_b64 exec, s[42:43], 0xffff")
    A("  s_waitcnt lgkmcnt(0)")
    A("  ds_read_b128 v[32:35], v16")
    A("  s_waitcnt lgkmcnt(0)")
    A("  global_store_dwordx4 v18, v[32:35], s[26:27] sc1")
    A("  s_mov_b64 exec, -1")
    A(f"  s_waitcnt vmcnt({1+TCH})")
    A("  s_branch KB_B0")
    A("KB_NOS:")
    A(f"  s_waitcnt vmcnt({TCH})")
    A("KB_B0:")
    A("  s_waitcnt lgkmcnt(0)")
    A("  s_barrier")
    STAMP(1)
    A("  s_mov_b64 s[34:35], 0")
    A("  v_mov_b32 v6, 1")
    for e in range(8):
        A(f"  v_cmp_gt_u32 s[{36+2*e}:{37+2*e}], s33, v{8+e}")
        A(f"  v_cmp_eq_u32 vcc, s33, v{8+e}")
        A(f"  v_lshrrev_b32 v{16+e}, 18, v{8+e}")
        A("  s_or_b64 s[34:35], s[34:35], vcc")
        A(f"  v_lshlrev_b32 v7, 2, v{16+e}")
        A(f"  v_add_u32 v7, {KB_CNT}, v7")
        A(f"  s_mov_b64 exec, s[{36+2*e}:{37+2*e}]")
        A(f"  ds_add_rtn_u32 v{24+e}, v7, v6")
        A("  s_mov_b64 exec, -1")
    A("  s_waitcnt lgkmcnt(0)")
    for e in range(8):
        A(f"  s_mov_b64 exec, s[{36+2*e}:{37+2*e}]")
        A(f"  v_cmp_lt_u32 vcc, 127, v{24+e}")
        A(f"  v_min_u32 v{24+e}, 127, v{24+e}")
        A(f"  v_lshlrev_b32 v7, 9, v{16+e}")
        A("  s_or_b64 s[34:35], s[34:35], vcc")
        A(f"  v_lshl_add_u32 v7, v{24+e}, 2, v7")
        A(f"  v_add_u32 v7, {KB_EL}, v7")
        A(f"  ds_write_b32 v7, v{8+e}")
    A("  s_mov_b64 exec, -1")
    A("  s_cmp_eq_u64 s[34:35], 0")
    A("  s_cbranch_scc1 KB_NOFLAG")
    A(f"  v_mov_b32 v7, {KB_FLAG}")
    A("  ds_write_b32 v7, v6")
    A("KB_NOFLAG:")
    A("  s_waitcnt lgkmcnt(0)")
    A("  s_barrier")
    STAMP(2)
    A(f"  v_mov_b32 v7, {KB_CNT}")
    A("  ds_read_b32 v28, v7 offset:48")
    A("  s_cmp_ge_u32 s28, 4")
    A("  s_cbranch_scc1 KB_MS")
    A("  ds_read_b128 v[16:19], v7")
    A("  ds_read_b128 v[20:23], v7 offset:16")
    A("  ds_read_b128 v[24:27], v7 offset:32")
    A("  s_waitcnt lgkmcnt(0)")
    A("  v_readfirstlane_b32 s51, v28")
    for i in range(10):
        A(f"  v_readfirstlane_b32 s{70+i}, v{16+i}")
    A("  s_cmp_lg_u32 s51, 0")
    A("  s_cbranch_scc1 KB_FALLBACK")
    for i in range(10):
        A(f"  s_add_u32 s{70+i}, s{70+i}, 31")
        A(f"  s_lshr_b32 s{70+i}, s{70+i}, 5")
        A(f"  s_max_u32 s{70+i}, s{70+i}, 1")
    A("  s_mov_b32 s48, s70")
    for i in range(1, 8):
        A(f"  s_lshl_b32 s61, s{70+i}, {4*i}")
        A("  s_or_b32 s48, s48, s61")
    A("  s_lshl_b32 s61, s79, 4")
    A("  s_or_b32 s49, s78, s61")
    A(f"  v_lshlrev_b32 v{V_RC}, 4, v2")
    A(f"  v_lshlrev_b32 v{V_G32}, 5, v3")
    A("  s_lshl_b32 s44, s28, 9")
    A(f"  s_add_u32 s44, s44, {KB_EL}")
    A("  s_mov_b32 s64, 0")
    A("  s_mov_b32 s53, s70")
    for w in range(1, 4):
        A(f"  s_cmp_eq_u32 s28, {w}")
        A(f"  s_cselect_b32 s53, s{70+w}, s53")
    A("  s_mov_b32 s52, 1")
    issue_a()
    A("  s_waitcnt lgkmcnt(0)")
    issue_b(0)
    A("  v_min_u32 v6, 4, v1")
    A("  v_lshl_add_u32 v8, v6, 2, s28")
    A("  s_mov_b32 s58, 5")
    A("  v_cmp_le_u32 vcc, 10, v8")
    A("  v_subrev_u32 v9, 10, v8")
    A("  v_mov_b32 v10, 0")
    A("  v_mov_b32 v11, 1")
    A("  v_cndmask_b32 v8, v8, v9, vcc")
    A("  v_cndmask_b32 v10, v10, v11, vcc")
    A("  v_lshlrev_b32 v6, 2, v8")
    A("  v_mov_b32 v12, s48")
    A("  v_mov_b32 v13, s49")
    A("  v_lshrrev_b64 v[12:13], v6, v[12:13]")
    A("  v_and_b32 v12, 15, v12")
    A("  v_lshlrev_b32 v13, 18, v12")
    A(f"  v_lshlrev_b32 v{V_TE}, 9, v8")
    A(f"  v_add_u32 v{V_TE}, {KB_EL}, v{V_TE}")
    A(f"  v_or_b32 v{V_TE}, v{V_TE}, v13")
    A(f"  v_lshl_or_b32 v{V_TE}, v10, 22, v{V_TE}")
    A(f"  v_mul_u32_u24 v{V_TP}, {PG}, v8")
    A(f"  v_add_u32 v{V_TP}, {KB_P}, v{V_TP}")
    A(f"  v_or_b32 v{V_TP}, v{V_TP}, v13")
    A(f"  v_mul_u32_u24 v{V_TA}, {4*A2S}, v8")
    A(f"  v_lshl_add_u32 v{V_TA}, v10, 8, v{V_TA}")
    A(f"  v_lshl_or_b32 v{V_TA}, v10, 20, v{V_TA}")
    A("  v_cmp_gt_u32 vcc, s58, v1")
    A(f"  v_mov_b32 v6, {KB_DUMMY | (1 << 18)}")
    A(f"  v_mov_b32 v7, {KB_P | (1 << 18)}")
    A(f"  v_cndmask_b32 v{V_TE}, v6, v{V_TE}, vcc")
    A(f"  v_cndmask_b32 v{V_TP}, v7, v{V_TP}, vcc")
    A("  s_nop 1")
    for st in range(1, DPRE):
        issue_a()
        A("  s_waitcnt lgkmcnt(0)")
        issue_b(st)
    A(f"  v_mul_u32_u24 v{V_PL}, {PS}, v2")
    A(f"  v_lshl_add_u32 v{V_PL}, v3, 4, v{V_PL}")
    A(f"  v_mul_u32_u24 v{V_A2L}, {A2S}, v3")
    A(f"  v_add_u32 v{V_A2L}, v{V_A2L}, v{V_RC}")
    A(f"  v_mov_b32 v{V_ONE}, 1")
    A("  s_mov_b32 s60, 0x3f803f80")
    for i in range(4):
        A(f"  v_mov_b32 v{ONES+i}, s60")
    STAMP(3)
    if DPRE < D:
        lds_spin("KB_SDW", KB_SDF, 4, 6, 7)
    for st in range(DPRE, D):
        issue_a()
        A("  s_waitcnt lgkmcnt(0)")
        issue_b(st)
    issue_a()
    A("  s_mov_b32 s54, 0")
    cons_next_item()
    A("  s_mov_b32 s45, s42")
    A("  s_mov_b32 s41, 1")
    A("  s_mov_b32 s65, 0")
    lds_spin("KB_GSW", KB_GS, 4, 6, 7)
    A(f"  v_add_u32 v{V_TMP2}, s43, v{V_PL}")
    A(f"  ds_read_b128 {vr(PF,4)}, v{V_TMP2}")
    STAMP(4)
    if os.environ.get("SECT") == "1":
        for i in range(6):
            A(f"  s_mov_b32 s{88+i}, 0")
        A("  s_memtime s[98:99]")
        A("  s_waitcnt lgkmcnt(0)")
        A("  s_mov_b32 s97, s98")
    if "b" in os.environ.get("PRIO", "ab"):
        A("  s_setprio 2")
    A("KB_LOOP:")
    for st in range(D):
        pf = PF if (st & 1) == 0 else PF2
        pfn = PF2 if (st & 1) == 0 else PF
        A("  s_sub_u32 s55, s55, 1")
        A("  s_add_u32 s43, s43, 64")
        A("  s_mov_b32 s40, 0")
        A("  s_cmp_eq_u32 s55, 0")
        A(f"  s_cbranch_scc1 KB_CNO{st}")
        def cn():
            cons_next_item()
            A("  s_mov_b32 s40, 1")
        ool(f"KB_CNO{st}", f"KB_CN{st}", cn)
        A(f"KB_CN{st}:")
        SEC(0)
        A(f"  s_waitcnt vmcnt({8*(D-1)}) lgkmcnt(0)")
        SEC(1)
        A(f"  v_add_u32 v{V_TMP2}, s43, v{V_PL}")
        A(f"  ds_read_b128 {vr(pfn,4)}, v{V_TMP2}")
        signal_pending(st)
        A("  s_cmp_lg_u32 s41, 0")
        A(f"  s_cbranch_scc1 KB_CF{st}")
        def cf(st=st, pf=pf):
            consume(st, pf, True)
            for i in range(2):
                A(f"  v_mad_u32_u16 v{AD+i}, v{ENT+i}, s32, v{V_RC}")
            consume_tail(pf, True)
        ool(f"KB_CF{st}", f"KB_CC{st}", cf)
        consume(st, pf, False)
        for i in range(2):
            A(f"  v_mad_u32_u16 v{AD+i}, v{ENT+i}, s32, v{V_RC}")
        consume_tail(pf, False)
        A(f"KB_CC{st}:")
        SEC(2)
        for i in range(2, 8):
            A(f"  v_mad_u32_u16 v{AD+i}, v{ENT+i}, s32, v{V_RC}")
        for i in range(8):
            A(f"  buffer_load_dwordx4 {vr(RB+32*st+4*i,4)}, v{AD+i}, s[16:19], s64 offen")
        SEC(3)
        issue_a()
        SEC(4)
        A("  s_mov_b32 s41, s40")
        A("  s_cmp_lg_u32 s40, 0")
        A(f"  s_cbranch_scc1 KB_FIN{st}")
        def fin():
            finalize()
            A("  s_mov_b32 s45, s42")
            A("  s_cmp_ge_u32 s54, 6")
            A("  s_cbranch_scc1 KB_GEND")
        ool(f"KB_FIN{st}", f"KB_NOFIN{st}", fin)
        A(f"KB_NOFIN{st}:")
        SEC(5)
    A("  s_branch KB_LOOP")
    A("KB_GEND:")
    A("  s_waitcnt lgkmcnt(0)")
    signal_pending("E")
    A("KB_GDONE:")
    STAMP(5); RSTAMP(15); STAMP_OUT(14, 28, 1 << 20)
    A("  s_endpgm")
    emit_ool()
    A("KB_MS:")
    if "a" in os.environ.get("PRIO", "ab"):
        A("  s_setprio 3")
    A("  v_subrev_u32 v38, 256, v0")
    A("  v_lshlrev_b32 v5, 2, v38")
    A(f"  v_add_u32 v5, {KB_EL}, v5")
    for rd in range(5):
        A(f"  ds_read_b32 v{8+rd}, v5 offset:{1024*rd}")
    A("  s_waitcnt lgkmcnt(0)")
    A("  v_readfirstlane_b32 s51, v28")
    A("  s_cmp_lg_u32 s51, 0")
    A("  s_cbranch_scc1 KB_FALLBACK")
    OFFR = [13, 14, 15, 36, 37]
    DDR = 200
    for rd in range(5):
        A(f"  v_cmp_ne_u32 s[{36+2*rd}:{37+2*rd}], -1, v{8+rd}")
        A(f"  v_and_b32 v7, 0xffff, v{8+rd}")
        A(f"  v_lshlrev_b32 v{OFFR[rd]}, 4, v7")
    for rd in range(5):
        A(f"  s_mov_b64 exec, s[{36+2*rd}:{37+2*rd}]")
        A(f"  global_load_dwordx4 {vr(16+4*rd,4)}, v{OFFR[rd]}, s[26:27] sc1")
    A("  s_mov_b64 exec, -1")
    for rd in range(5):
        A(f"  v_lshrrev_b32 v7, 16, v{8+rd}")
        A(f"  v_lshlrev_b32 v7, 5, v7")
        A(f"  v_add_u32 v7, {KB_SD+16}, v7")
        A(f"  s_mov_b64 exec, s[{36+2*rd}:{37+2*rd}]")
        A(f"  ds_read_b128 {vr(DDR+4*rd,4)}, v7")
        A("  s_mov_b64 exec, -1")
    A("  v_lshlrev_b32 v5, 4, v1")
    A("  v_add_u32 v6, 0x10000, v5")
    for i in range(WEARLY):
        wload(i, 5, 6)
    A("  s_mov_b32 s49, 0")
    A(f"  s_waitcnt vmcnt({4*WEARLY})")
    A("  s_branch KB_SCHK")
    A("KB_SRETRY:")
    for rd in range(5):
        A(f"  s_mov_b64 exec, s[{36+2*rd}:{37+2*rd}]")
        A(f"  global_load_dwordx4 {vr(16+4*rd,4)}, v{OFFR[rd]}, s[26:27] sc1")
    A("  s_mov_b64 exec, -1")
    A("  s_waitcnt vmcnt(0)")
    A("KB_SCHK:")
    A("  s_mov_b64 s[46:47], 0")
    for rd in range(5):
        A(f"  s_mov_b64 exec, s[{36+2*rd}:{37+2*rd}]")
        for h in range(4):
            A(f"  v_cmp_eq_u32 vcc, -1, v{16+4*rd+h}")
            A("  s_or_b64 s[46:47], s[46:47], vcc")
    A("  s_mov_b64 exec, -1")
    A("  s_cmp_eq_u64 s[46:47], 0")
    A("  s_cbranch_scc1 KB_SOK")
    A("  s_add_u32 s49, s49, 1")
    A("  s_cmp_ge_u32 s49, 0x40000")
    A("  s_cbranch_scc1 KB_SOK")
    A("  s_sleep 2")
    A("  s_branch KB_SRETRY")
    A("KB_SOK:")
    if DIAG:
        A("  s_mov_b32 s90, s49")
    lds_signal(KB_SDF, 6, 7)
    STAMP(3)
    A("  s_mov_b32 s60, 0x3e4ccccd")
    for rd in range(5):
        S = 16 + 4 * rd
        Dd = DDR + 4 * rd
        A(f"  s_mov_b64 exec, s[{36+2*rd}:{37+2*rd}]")
        for h in range(4):
            A(f"  v_add_f32 v{S+h}, v{S+h}, v{Dd+h}")
        for h in range(4):
            A(f"  v_mul_f32 v{Dd+h}, s60, v{S+h}")
        for h in range(4):
            A(f"  v_max_f32 v{S+h}, v{S+h}, v{Dd+h}")
        for h in range(4):
            A(f"  v_exp_f32 v{S+h}, v{S+h}")
        A(f"  v_add_u32 v6, {256*rd}, v38")
        A("  v_lshrrev_b32 v7, 7, v6")
        A(f"  v_mul_u32_u24 v7, {PG}, v7")
        A("  v_and_b32 v6, 127, v6")
        A("  v_lshl_add_u32 v7, v6, 1, v7")
        A(f"  v_bfe_u32 v6, v{8+rd}, 16, 2")
        A(f"  v_mul_u32_u24 v6, {4*PS}, v6")
        A("  v_add_u32 v7, v7, v6")
        A(f"  v_add_u32 v7, {KB_P}, v7")
        A(f"  v_cvt_pk_bf16_f32 v{Dd}, v{S}, v{S+1}")
        A(f"  v_cvt_pk_bf16_f32 v{Dd+1}, v{S+2}, v{S+3}")
        A(f"  ds_write_b16 v7, v{Dd}")
        A(f"  ds_write_b16_d16_hi v7, v{Dd} offset:{PS}")
        A(f"  ds_write_b16 v7, v{Dd+1} offset:{2*PS}")
        A(f"  ds_write_b16_d16_hi v7, v{Dd+1} offset:{3*PS}")
    A("  s_mov_b64 exec, -1")
    lds_signal(KB_GS, 6, 7)
    if "a" in os.environ.get("PRIO", "ab"):
        A("  s_setprio 0")
    SPF = os.environ.get("SPF", "0")
    if SPF == "2":
        spf_code()
    gemm_setup()
    for i in range(WEARLY, RW):
        wload(i)
    if SPF == "1":
        spf_code()
    A("  s_branch KB_MW2")
    A("KB_FALLBACK:")
    gen_fallback()
    A(f"  v_mov_b32 v7, {KB_DONE}")
    A("  v_mov_b32 v8, 10")
    A("  v_mov_b32 v9, 10")
    A("  ds_write_b64 v7, v[8:9]")
    A("  s_waitcnt vmcnt(0) lgkmcnt(0)")
    A("  s_barrier")
    A("  s_cmp_lt_u32 s28, 4")
    A("  s_cbranch_scc1 KB_END")
    A("KB_MW:")
    gemm_setup()
    for i in range(RW):
        wload(i)
    A("KB_MW2:")
    STAMP(4)
    gen_gemm()
    STAMP(7); RSTAMP(15); STAMP_OUT(14, 28, 1 << 20)
    A("KB_END:")
    A("  s_endpgm")

def gen_fallback():
    A("  s_mov_b32 s62, 0")
    A("  v_lshlrev_b32 v48, 3, v1")
    A("  v_lshlrev_b32 v49, 2, v1")
    A("  s_mov_b32 s66, 0x3e4ccccd")
    A("  s_mov_b32 s67, 0xffff0000")
    A("KF_NODE:")
    A("  s_mul_i32 s63, s28, 5")
    A("  s_add_u32 s63, s63, s62")
    A("  s_add_u32 s64, s63, s29")
    for i in range(20):
        A(f"  v_mov_b32 v{16+i}, 0")
    A("  s_lshl_b32 s60, s63, 5")
    A(f"  s_add_u32 s60, s60, {KB_SD+16}")
    A("  v_mov_b32 v7, s60")
    A("  ds_read_b128 v[36:39], v7")
    A("  s_mov_b32 s65, 0")
    A("KF_CHUNK:")
    A("  v_add_u32 v50, s65, v49")
    A("  global_load_dword v40, v50, s[8:9]")
    A("  global_load_dword v41, v50, s[6:7]")
    A("  s_waitcnt vmcnt(0) lgkmcnt(0)")
    A("  v_cmp_eq_u32 s[68:69], s64, v40")
    A("  s_nop 1")
    A("KF_EDGE:")
    A("  s_cmp_eq_u64 s[68:69], 0")
    A("  s_cbranch_scc1 KF_NEXT")
    A("  s_ff1_i32_b64 s60, s[68:69]")
    A("  s_bitset0_b64 s[68:69], s60")
    A("  v_readlane_b32 s61, v41, s60")
    A("  s_nop 3")
    A("  s_lshl_b32 s60, s61, 9")
    A("  v_add_u32 v50, s60, v48")
    A("  buffer_load_dwordx2 v[42:43], v50, s[16:19], 0 offen")
    A("  s_lshl_b32 s60, s61, 4")
    A("  v_mov_b32 v51, s60")
    A("  s_mov_b32 s61, 0")
    A("KF_SRETRY:")
    A("  global_load_dwordx4 v[44:47], v51, s[26:27] sc1")
    A("  s_waitcnt vmcnt(0)")
    A("  s_mov_b64 s[42:43], 0")
    for h in range(4):
        A(f"  v_cmp_eq_u32 vcc, -1, v{44+h}")
        A("  s_or_b64 s[42:43], s[42:43], vcc")
    A("  s_cmp_eq_u64 s[42:43], 0")
    A("  s_cbranch_scc1 KF_SOK")
    A("  s_add_u32 s61, s61, 1")
    A("  s_cmp_ge_u32 s61, 0x40000")
    A("  s_cbranch_scc1 KF_SOK")
    A("  s_sleep 4")
    A("  s_branch KF_SRETRY")
    A("KF_SOK:")
    for h in range(4):
        A(f"  v_add_f32 v{44+h}, v{44+h}, v{36+h}")
        A(f"  v_mul_f32 v52, s66, v{44+h}")
        A(f"  v_max_f32 v{44+h}, v{44+h}, v52")
        A(f"  v_exp_f32 v{44+h}, v{44+h}")
    A("  s_nop 0")
    A("  v_cvt_pk_bf16_f32 v52, v44, v45")
    A("  v_cvt_pk_bf16_f32 v53, v46, v47")
    A("  v_lshlrev_b32 v44, 16, v52")
    A("  v_and_b32 v45, s67, v52")
    A("  v_lshlrev_b32 v46, 16, v53")
    A("  v_and_b32 v47, s67, v53")
    A("  v_lshlrev_b32 v52, 16, v42")
    A("  v_and_b32 v53, s67, v42")
    A("  v_lshlrev_b32 v54, 16, v43")
    A("  v_and_b32 v55, s67, v43")
    for h in range(4):
        A(f"  v_add_f32 v{32+h}, v{32+h}, v{44+h}")
        for f in range(4):
            A(f"  v_fma_f32 v{16+4*h+f}, v{44+h}, v{52+f}, v{16+4*h+f}")
    A("  s_branch KF_EDGE")
    A("KF_NEXT:")
    A("  s_add_u32 s65, s65, 256")
    A(f"  s_cmp_lt_u32 s65, {E*4}")
    A("  s_cbranch_scc1 KF_CHUNK")
    A("  s_mov_b32 s61, 0x3089705f")
    A(f"  s_mul_i32 s60, s63, {A2S}")
    A("  v_add_u32 v50, s60, v48")
    for h in range(4):
        A(f"  v_add_f32 v{32+h}, s61, v{32+h}")
        A(f"  v_rcp_f32 v{32+h}, v{32+h}")
        A("  s_nop 0")
        A(f"  v_mul_f32 v{32+h}, 0.25, v{32+h}")
        for f in range(4):
            A(f"  v_mul_f32 v{16+4*h+f}, v{16+4*h+f}, v{32+h}")
        A(f"  v_cvt_pk_bf16_f32 v52, v{16+4*h}, v{17+4*h}")
        A(f"  v_cvt_pk_bf16_f32 v53, v{18+4*h}, v{19+4*h}")
        A(f"  ds_write_b64 v50, v[52:53] offset:{h*512}")
    A("  s_add_u32 s62, s62, 1")
    A("  s_cmp_lt_u32 s62, 5")
    A("  s_cbranch_scc1 KF_NODE")

RW = int(os.environ.get("RW", "4"))
WR = 40
AF = 200
GACC = 224 - 0
def gacc(mt, nt):
    i = mt * 4 + nt
    if i < 8:
        return 224 + 4 * i
    return 24 + 4 * (i - 8)
VW0 = 4
VW1 = 5
VA0 = 6
VA1 = 7
VAB = 8
VAB = 13

VWA = [4, 5, 6, 7]
VWB = [8, 9, 10, 11]
VAH = [12, 13, 14, 15]
VAH2 = [16, 17, 18, 19]
VPO = 20
VPO2 = 21
def gemm_setup():
    A("  s_and_b32 s66, s2, 3")
    for hh in range(4):
        A(f"  s_add_u32 s60, s66, {hh}")
        A("  s_and_b32 s60, s60, 3")
        A(f"  s_lshl_b32 s{36+2*hh}, s60, 14")
        A(f"  s_add_u32 s{37+2*hh}, s{36+2*hh}, 8192")
        A("  s_lshl_b32 s60, s60, 9")
        if hh == 0:
            A(f"  v_mul_u32_u24 v{VPO}, {A2S}, v2")
            A(f"  v_lshl_add_u32 v{VPO}, v3, 4, v{VPO}")
        A(f"  v_add_u32 v{VAH[hh]}, s60, v{VPO}")
        A(f"  v_add_u32 v{VAH2[hh]}, {32*A2S}, v{VAH[hh]}")
    A(f"  v_lshlrev_b32 v{VWA[0]}, 4, v1")
    for q in range(1, 4):
        A(f"  v_add_u32 v{VWA[q]}, {2048*q}, v{VWA[0]}")
    for q in range(4):
        A(f"  v_add_u32 v{VWB[q]}, 0x10000, v{VWA[q]}")

def kdec(i):
    half = i >> 4; t = i & 15
    return half, t >> 2, t & 3

def wload(i, a0=None, a1=None):
    half, hh, q = kdec(i)
    slot = i % RW
    b = WR + 16 * slot
    so = f"s{36+2*hh+half}"
    A(f"  buffer_load_dwordx4 {vr(b,4)}, v{VWA[q]}, s[20:23], {so} offen")
    A(f"  buffer_load_dwordx4 {vr(b+4,4)}, v{VWA[q]}, s[20:23], {so} offen offset:1024")
    A(f"  buffer_load_dwordx4 {vr(b+8,4)}, v{VWB[q]}, s[20:23], {so} offen")
    A(f"  buffer_load_dwordx4 {vr(b+12,4)}, v{VWB[q]}, s[20:23], {so} offen offset:1024")

def aload(i):
    half, hh, q = kdec(i)
    b = AF + 12 * (i & 1)
    o = (4 * half + q) * 64
    A(f"  ds_read_b128 {vr(b,4)}, v{VAH[hh]} offset:{o}")
    A(f"  ds_read_b128 {vr(b+4,4)}, v{VAH[hh]} offset:{o+16*A2S}")
    A(f"  ds_read_b128 {vr(b+8,4)}, v{VAH2[hh]} offset:{o}")

VA0 = 22
VA1 = 23
def poll(half):
    A(f"  v_mov_b32 v{VA0}, {KB_DONE + 4*half}")
    A(f"KB_POLL{half}:")
    A(f"  ds_read_b32 v{VA1}, v{VA0}")
    A("  s_waitcnt lgkmcnt(0)")
    A(f"  v_readfirstlane_b32 s60, v{VA1}")
    A("  s_cmp_ge_u32 s60, 10")
    A(f"  s_cbranch_scc1 KB_POLLD{half}")
    A("  s_sleep 2")
    A(f"  s_branch KB_POLL{half}")
    A(f"KB_POLLD{half}:")

def gen_gemm():
    for i in range(32):
        if (i & 15) == 0:
            poll(i >> 4)
            if i == 16: STAMP(6)
            else: STAMP(5)
            aload(i)
        nxt = (i + 1) < 32 and ((i + 1) & 15) != 0
        if nxt:
            aload(i + 1)
        rem = min(RW - 1, 31 - i)
        A(f"  s_waitcnt vmcnt({4*rem})")
        A(f"  s_waitcnt lgkmcnt({3 if nxt else 0})")
        slot = i % RW
        b = AF + 12 * (i & 1)
        for mt in range(3):
            for nt in range(4):
                a = gacc(mt, nt)
                c = "0" if i == 0 else vr(a, 4)
                A(f"  v_mfma_f32_16x16x32_bf16 {vr(a,4)}, {vr(WR+16*slot+4*nt,4)}, {vr(b+4*mt,4)}, {c}")
        if i + RW < 32:
            wload(i + RW)
    A("  v_add_u32 v6, s29, v2")
    A("  v_lshlrev_b32 v6, 9, v6")
    A("  v_lshl_add_u32 v6, v3, 4, v6")
    A("  s_and_b32 s60, s28, 3")
    A("  s_lshl_b32 s60, s60, 7")
    A("  v_add_u32 v6, s60, v6")
    A("  v_add_u32 v7, 0x2000, v6")
    A("  v_add_u32 v8, 0x4000, v6")
    A("  v_cmp_gt_u32 vcc, 8, v2")
    A("  s_nop 4")
    for mt in range(3):
        if mt == 2:
            A("  s_and_saveexec_b64 s[34:35], vcc")
        for p in range(2):
            a0 = gacc(mt, 2 * p); a1 = gacc(mt, 2 * p + 1)
            o = 40 + 8 * mt + 4 * p
            A(f"  v_cvt_pk_bf16_f32 v{o}, v{a0}, v{a0+1}")
            A(f"  v_cvt_pk_bf16_f32 v{o+1}, v{a0+2}, v{a0+3}")
            A(f"  v_cvt_pk_bf16_f32 v{o+2}, v{a1}, v{a1+1}")
            A(f"  v_cvt_pk_bf16_f32 v{o+3}, v{a1+2}, v{a1+3}")
            A(f"  global_store_dwordx4 v{6+mt}, {vr(o,4)}, s[12:13] offset:{64*p}")
    A("  s_mov_b64 exec, -1")

def desc(name, vgpr, sgpr):
    acc = (vgpr + 3) // 4 * 4
    A(f".amdhsa_kernel {name}")
    A(f"  .amdhsa_next_free_vgpr {vgpr}")
    A(f"  .amdhsa_next_free_sgpr {sgpr}")
    A(f"  .amdhsa_accum_offset {acc}")
    A("  .amdhsa_group_segment_fixed_size 0")
    A("  .amdhsa_kernarg_size 72")
    A("  .amdhsa_user_sgpr_count 2")
    A("  .amdhsa_user_sgpr_kernarg_segment_ptr 1")
    A("  .amdhsa_system_sgpr_workgroup_id_x 1")
    A(".end_amdhsa_kernel")

def main():
    A(HEADER.format(lds_a=KA_LDS, lds_b=KB_LDS).rstrip("\n"))
    gen_prep()
    gen_main()
    A('.section .rodata,"a"')
    A(".p2align 6")
    desc("gat_prep_kernel", 104, 102)
    A(".p2align 6")
    desc("gat_main_kernel", 256, 102)
    txt = "\n".join(x for x in out if x is not None) + "\n"
    path = sys.argv[1] if len(sys.argv) > 1 else "standalone__graph_attention_gat__graph.s"
    open(path, "w").write(txt)

main()
```
